```python
import torch

def _softmax(x, axis=-1):
    return torch.softmax(x, dim=axis)

def _gelu(x):
    return torch.nn.functional.gelu(x, approximate='tanh')

def _silu(x):
    return torch.nn.functional.silu(x)

def _sigmoid(x):
    return torch.sigmoid(x)

def _layernorm(x, axis=-1, eps=1e-05):
    m = x.mean(dim=axis, keepdim=True)
    v = x.var(dim=axis, keepdim=True, unbiased=False)
    return (x - m) / torch.sqrt(v + eps)

def _scatter_add(tgt, idx, src, axis=0):
    return tgt.clone().index_add_(axis, idx, src)

def _segment_sum(src, seg, n):
    out = torch.zeros((n,) + src.shape[1:], dtype=src.dtype)
    return out.index_add_(0, seg, src)

def _pad(x, pw):
    flat = tuple((v for pair in reversed(pw) for v in pair))
    return torch.nn.functional.pad(x, flat)
kernel_name = 'gated_mix__memory_aug_recurrent_mem_tr__swiglu_ffn__prompt'

def setup_inputs():

    _w = lambda a: (lambda t: t.to(torch.bfloat16) if t.is_floating_point() else t)(torch.as_tensor(a))

    def _A_setup():
        B, S, Dm = (1, 2048, 512)
        H, Dh = (32, 128)
        M, seg = (8, 32)
        seg = min(seg, S)
        S = S // seg * seg
        return {'x': _w((lambda *s: torch.randn(*s, dtype=torch.bfloat16) * 0.05)(B, S, Dm)), 'mem0': _w((lambda *s: torch.randn(*s, dtype=torch.bfloat16) * 0.4)(B, M, Dm)), 'Wq': _w((lambda *s: torch.randn(*s, dtype=torch.bfloat16) * 6.4)(Dm, H, Dh) * Dm ** (-0.5)), 'Wk': _w((lambda *s: torch.randn(*s, dtype=torch.bfloat16) * 6.4)(Dm, H, Dh) * Dm ** (-0.5)), 'Wv': _w((lambda *s: torch.randn(*s, dtype=torch.bfloat16) * 0.4)(Dm, H, Dh) * Dm ** (-0.5)), 'Wo': _w((lambda *s: torch.randn(*s, dtype=torch.bfloat16) * 0.4)(H, Dh, Dm) * (H * Dh) ** (-0.5)), 'seg_len': seg}
    _A_in = _A_setup()

    def _B_setup():
        B, S, D, F = (1, 2048, 512, 1376)
        return {'x': _w((lambda *s: torch.randn(*s, dtype=torch.bfloat16) * 0.05)(B, S, D)), 'w_gate': _w((lambda *s: torch.randn(*s, dtype=torch.bfloat16) * 0.05)(D, F)), 'w_up': _w((lambda *s: torch.randn(*s, dtype=torch.bfloat16) * 0.05)(D, F)), 'w_down': _w((lambda *s: torch.randn(*s, dtype=torch.bfloat16) * 0.05)(F, D))}
    _B_in = _B_setup()
    return {'A_x': _A_in['x'], 'A_mem0': _A_in['mem0'], 'A_Wq': _A_in['Wq'], 'A_Wk': _A_in['Wk'], 'A_Wv': _A_in['Wv'], 'A_Wo': _A_in['Wo'], 'A_seg_len': _A_in['seg_len'], 'B_x': _B_in['x'], 'B_w_gate': _B_in['w_gate'], 'B_w_up': _B_in['w_up'], 'B_w_down': _B_in['w_down'], 'gate_w': _w((lambda *s: torch.randn(*s, dtype=torch.bfloat16) * 0.05)(512) * 16.0)}

def reference(A_x, A_mem0, A_Wq, A_Wk, A_Wv, A_Wo, A_seg_len, B_x, B_w_gate, B_w_up, B_w_down, gate_w):

    def _A_ref(x, mem0, Wq, Wk, Wv, Wo, seg_len):
        B, S, Dm = x.shape
        H, Dh = (Wq.shape[1], Wq.shape[2])
        M = mem0.shape[1]
        scale = Dh ** (-0.5)
        n_seg = S // seg_len
        L = M + seg_len
        idx = torch.arange(L)
        mask = (idx[:, None] < M) | (idx[:, None] >= idx[None, :])
        mem = mem0
        outs = []
        for s in range(n_seg):
            xs = x[:, s * seg_len:(s + 1) * seg_len, :].clone()
            h = torch.concatenate([mem, xs], axis=1)
            q = torch.einsum('btd,dhe->bhte', h, Wq)
            k = torch.einsum('btd,dhe->bhte', h, Wk)
            v = torch.einsum('btd,dhe->bhte', h, Wv)
            scores = torch.einsum('bhqe,bhke->bhqk', q, k) * scale
            scores = torch.where(mask[None, None], scores, -1000000000.0)
            p = _softmax(scores, axis=-1)
            o = torch.einsum('bhqk,bhke->bhqe', p, v)
            o = torch.einsum('bhte,hed->btd', o, Wo)
            mem = o[:, :M, :].clone()
            outs.append(o[:, M:, :])
        return torch.concatenate(outs, axis=1)

    def _B_ref(x, w_gate, w_up, w_down):
        g = _silu(x @ w_gate)
        u = x @ w_up
        return g * u @ w_down
    x = A_x
    g = _sigmoid((x * gate_w).sum(-1, keepdims=True))
    a = _A_ref(x, A_mem0, A_Wq, A_Wk, A_Wv, A_Wo, A_seg_len)
    b = _B_ref(x, B_w_gate, B_w_up, B_w_down)
    return g * a + (1 - g) * b
```

```python
import re

def vr(a, n=1): return f"v{a}" if n == 1 else f"v[{a}:{a+n-1}]"
def ar(a, n=1): return f"a{a}" if n == 1 else f"a[{a}:{a+n-1}]"
def sr(a, n=1): return f"s{a}" if n == 1 else f"s[{a}:{a+n-1}]"
def R(a, n=1):
    assert (a < 256) == (a + n - 1 < 256)
    return vr(a, n) if a < 256 else ar(a - 256, n)

_REG = re.compile(r"^(-|abs\(|\|)?([vas])(\d+|\[(\d+):(\d+)\])\)?\|?$")
def regs_of(op):
    op = op.strip()
    if op in ("vcc", "vcc_lo", "vcc_hi"): return {("s", "vcc")}
    if op in ("exec", "exec_lo", "exec_hi"): return {("s", "exec")}
    if op == "m0": return {("s", "m0")}
    m = _REG.match(op)
    if not m: return set()
    k = m.group(2)
    if m.group(4) is not None:
        return {(k, i) for i in range(int(m.group(4)), int(m.group(5)) + 1)}
    return {(k, int(m.group(3)))}

TRANS = ("v_exp_f32", "v_log_f32", "v_rcp_f32", "v_rsq_f32", "v_sqrt_f32", "v_sin_f32", "v_cos_f32")
class Ins:
    def __init__(self, text):
        self.text = text
        t = text.split(";")[0].strip()
        t = re.sub(r"\s(op_sel|op_sel_hi|neg_lo|neg_hi|quad_perm):\[[^\]]*\]", lambda m: " " + m.group(1), t)
        parts = t.split(None, 1)
        self.op = parts[0]
        rest = parts[1] if len(parts) > 1 else ""
        ops = [o.strip() for o in rest.split(",")] if rest else []
        self.mods = ""
        if ops:
            sp = ops[-1].split(None, 1)
            ops[-1] = sp[0]
            self.mods = sp[1] if len(sp) > 1 else ""
        self.ops = ops
        op = self.op
        self.kind = "other"
        self.w = set(); self.r = set(); self.srcc = set(); self.ab = set(); self.stdata = set()
        self.passes = 0
        rs = [regs_of(o) for o in ops]
        if op.startswith("v_mfma") or op.startswith("v_smfmac"):
            self.kind = "mfma"
            self.passes = 8 if "32x32" in op else 4
            self.w = rs[0]
            if op.startswith("v_smfmac"):
                self.srcc = rs[0]; self.ab = rs[1] | rs[2] | rs[3]
            else:
                self.srcc = rs[3]; self.ab = rs[1] | rs[2]
            self.r = self.srcc | self.ab
        elif op.startswith("v_"):
            self.kind = "valu"
            if op.startswith("v_permlane") and "swap" in op:
                self.w = rs[0] | rs[1]; self.r = rs[0] | rs[1]
            elif op.startswith("v_cmpx"):
                self.w = rs[0] | {("s", "exec")}; self.r = set().union(*rs[1:])
            elif op.startswith(("v_add_co", "v_sub_co", "v_addc_co", "v_subb_co")):
                self.w = rs[0] | rs[1]; self.r = set().union(*rs[2:])
            else:
                self.w = rs[0]; self.r = set().union(*rs[1:]) if len(rs) > 1 else set()
                if op.startswith(("v_fmac", "v_writelane", "v_pk_fmac")) or "dpp" in op: self.r |= rs[0]
            self.dpp = "dpp" in op or "row_" in self.mods or "quad_perm" in self.mods
        elif op.startswith(("buffer_", "global_")):
            self.kind = "vmem"
            lds = " lds" in (" " + self.mods)
            if "load" in op and not lds and "load_lds" not in op:
                self.w = rs[0]; self.r = set().union(*rs[1:])
            elif "atomic" in op:
                self.r = set().union(*rs)
                if "sc0" in self.mods: self.w = rs[0]
            elif op in ("buffer_inv", "buffer_wbl2"):
                pass
            else:
                self.r = set().union(*rs)
                if lds or "load_lds" in op: self.r |= {("s", "m0")}; self.dma = True
                if "store" in op and ("x3" in op or "x4" in op):
                    self.stdata = rs[0] if op.startswith("buffer_") else rs[1]
        elif op.startswith("ds_"):
            self.kind = "ds"
            if "read" in op or "permute" in op or "swizzle" in op:
                self.w = rs[0]; self.r = set().union(*rs[1:])
            else:
                self.r = set().union(*rs)
        elif op.startswith("s_"):
            self.kind = "salu"
            if op.startswith(("s_cmp", "s_bitcmp", "s_cbranch", "s_branch", "s_waitcnt", "s_barrier", "s_nop", "s_sleep", "s_endpgm", "s_setprio")):
                self.r = set().union(*rs) if rs else set()
            elif rs:
                self.w = rs[0]; self.r = set().union(*rs[1:]) if len(rs) > 1 else set()
                if "saveexec" in op: self.w |= {("s", "exec")}
        self.states = 1
        if op == "s_nop": self.states = int(ops[0], 0) + 1
    def vw(self): return {x for x in self.w if x[0] in "va"}

def need(p, c):
    n = 0
    vec = lambda s: {x for x in s if x[0] in "va"}
    sca = lambda s: {x for x in s if x[0] == "s"}
    if p.kind == "valu":
        pw = vec(p.w); ps = sca(p.w)
        if c.kind == "mfma":
            if pw & c.r: n = max(n, 2)
            if ("s", "exec") in ps: n = max(n, 4)
        if c.kind == "valu":
            if p.op.startswith(TRANS) and (pw & c.r) and not c.op.startswith(TRANS): n = max(n, 1)
            if p.op.startswith(TRANS) and (pw & c.r): n = max(n, 1)
            if c.op.startswith("v_permlane") and (pw & c.r): n = max(n, 2)
            if c.dpp and (pw & c.r): n = max(n, 2)
            if c.op.startswith(("v_readlane", "v_readfirstlane")) and (pw & c.r): n = max(n, 1)
            if (ps - {("s", "exec")}) & c.r:
                n = max(n, 4 if c.op.startswith(("v_readlane", "v_writelane")) else 2)
            if ("s", "exec") in ps:
                if c.dpp: n = max(n, 5)
                if c.op.startswith(("v_permlane", "v_readlane", "v_readfirstlane", "v_writelane")): n = max(n, 4)
                if ("s", "exec") in c.r: n = max(n, 2)
        if c.kind == "vmem" and (ps & c.r): n = max(n, 5)
        if c.kind == "salu" and (ps & c.r) and not c.op.startswith("s_cbranch"): n = max(n, 1)
    if p.kind == "mfma":
        big = p.passes == 8
        if c.kind == "mfma":
            if p.w & c.ab: n = max(n, 12 if big else 8)
            if p.w & c.srcc and not (p.w == c.srcc and p.passes == c.passes): n = max(n, 10 if big else 6)
        else:
            if p.w & (c.r | c.w): n = max(n, 12 if big else 8)
            if c.kind == "valu" and (p.srcc & c.w): n = max(n, 7 if big else 3)
    if p.kind == "vmem" and p.stdata:
        if p.stdata & c.w: n = max(n, 2)
    if p.kind == "salu" and ("s", "m0") in p.w and c.kind == "vmem" and ("s", "m0") in c.r: n = max(n, 1)
    return n

class Asm:
    def __init__(self):
        self.lines = []
        self._lab = 0
    def __call__(self, s=""):
        for l in s.split("\n"):
            l = l.strip()
            if not l: continue
            self.lines.append(l if l.endswith(":") else "    " + l)
    def raw(self, s):
        for l in s.split("\n"): self.lines.append("\0" + l)
    def label(self, name): self.lines.append(name + ":")
    def newlabel(self, base="L"):
        self._lab += 1
        return f"{base}_{self._lab}"
    def finalize(self, verbose=False):
        items = []
        for l in self.lines:
            if l.startswith("\0"): items.append(("raw", l[1:]))
            elif l.endswith(":") and not l.startswith(" "): items.append(("label", l[:-1]))
            elif l.strip().startswith(";") or l.strip().startswith("."): items.append(("raw", l))
            else: items.append(("ins", Ins(l.strip())))
        WIN = 14
        branches_to = {}
        for i, (k, p) in enumerate(items):
            if k == "ins" and p.op.startswith(("s_branch", "s_cbranch")):
                branches_to.setdefault(p.ops[0], []).append(i)
        extra = {}
        for idx, (k, c) in enumerate(items):
            if k != "ins" or c.kind == "other": continue
            if c.kind == "salu" and not c.r: continue
            miss = 0
            stack = [(idx - 1, 0)]
            while stack:
                i, st = stack.pop()
                while i >= 0 and st < WIN:
                    kk, p = items[i]
                    if kk == "label":
                        for b in branches_to.get(p, []):
                            stack.append((b - 1, st + 1 + extra.get(b, 0)))
                        i -= 1; continue
                    if kk == "raw":
                        i -= 1; continue
                    if p.op in ("s_branch", "s_endpgm", "s_setpc_b64"): break
                    nd = need(p, c)
                    if nd > st: miss = max(miss, nd - st)
                    st += p.states + extra.get(i, 0); i -= 1
            if miss:
                extra[idx] = miss
                if verbose: print("nop", miss, "before", c.text)
        self.inserted = len(extra)
        out = []
        for i, (k, p) in enumerate(items):
            if i in extra: out.append(f"    s_nop {extra[i]-1}")
            out.append(p if k == "raw" else (p + ":" if k == "label" else "    " + p.text))
        return "\n".join(out) + "\n"
    def text(self):
        return "\n".join(l[1:] if l.startswith("\0") else l for l in self.lines) + "\n"

def kernel_desc(name, vgpr, sgpr, accum):
    return f""".section .rodata,"a"
.p2align 6
.amdhsa_kernel {name}
  .amdhsa_next_free_vgpr {vgpr}
  .amdhsa_next_free_sgpr {sgpr}
  .amdhsa_accum_offset {accum}
  .amdhsa_group_segment_fixed_size 0
  .amdhsa_kernarg_size 120
  .amdhsa_user_sgpr_count 2
  .amdhsa_user_sgpr_kernarg_segment_ptr 1
  .amdhsa_system_sgpr_workgroup_id_x 1
  .amdhsa_float_denorm_mode_32 3
.end_amdhsa_kernel
"""
```

```python
from common import *
L_MEM, L_KX, L_VX, L_QB, L_KB, L_OB, L_SEL, L_H0, L_H1 = 0x0, 0x2000, 0x4000, 0x6000, 0x6900, 0x7200, 0x7A00, 0x8000, 0x18000
LB, IDX, SCAT, MST, QW, QR, KR, OW, TRQ, TRO, G0, MA1, MA2, MA3, VM, VM1 = range(16)
T0, T1 = 124, 125
MEM = 16
QA, KA, VA = 48, 56, 112
SX, OX = 48, 56
QO, KX, SM = 64, 80, 120
KO, VX, ONES, PX = 80, 96, 104, 108
LX, PMA, ZZ, PMB = 64, 68, 70, 72
NEG = 116
KST = 120
TA, TB, PG, WARM = 124, 125, 126, 127
OO = 72
WOS = [80, 88, 96, 104, 112, 48, 56, 64]
def WQ_res(p, t): return 128 + 8 * (2 * p + t)
def WQ_stg(p, t): return [64, 80, 96, 64][p] + 8 * t
def WO_res(tp, k2): return 192 + 8 * (2 * tp + k2)
def WKf(ks, t): return 256 + 8 * (2 * ks + t)
def WVf(ks, t): return 384 + 8 * (2 * ks + t)
sH, sS, sMc, sMn, sMr, sPc, sPr, sKV, sEX, sC, sNC, sPRGKV, sPRGKM, sT0, sT1, sW1K, sW2K, sOM = 60, 61, 62, 63, 64, 65, 66, 67, 68, 69, 70, 71, 72, 73, 74, 75, 76, 78
sPc2, sVV, sKXD, sVXD, sWRM, sPGA, sKMs, sVMs = 80, 81, 82, 83, 77, 84, 79, 78
QOFF = [0, 256, 2048, 2304]

def sm(acc, a, b): return f"v_smfmac_f32_16x16x64_bf16 {R(acc,4)}, {R(a,4)}, {R(b,8)}, v{IDX}"
def mf(acc, a, b, c=None): return f"v_mfma_f32_16x16x32_bf16 {R(acc,4)}, {R(a,4)}, {R(b,4)}, {R(acc,4) if c is None else c}"
def mf16(acc, a, b): return f"v_mfma_f32_16x16x16_bf16 {R(acc,4)}, {R(a,2)}, {R(b,2)}, {R(acc,4)}"
def q_(ks, t): return sm(QA + 4*t, MEM + 4*ks, WQ_res(ks >> 1, t) if ks % 2 == 0 else WQ_stg(ks >> 1, t))
def k_(ks, t): return sm(KA + 4*t, MEM + 4*ks, WKf(ks, t))
def v_(ks, t): return sm(VA + 4*t, MEM + 4*ks, WVf(ks, t))

def trq_reads(dst, base_imm, treg, add10000=False):
    out = []
    for p in range(4):
        if p == 0: out.append(f"v_mov_b32 v{treg}, v{TRQ}")
        else:
            out.append(f"v_add_u32 v{treg}, {p*16384}, v{TRQ}")
            out.append(f"v_and_b32 v{treg}, 0xffff, v{treg}")
        if add10000: out.append(f"v_add_u32 v{treg}, 0x10000, v{treg}")
        for t in range(2):
            if t: out.append(f"v_xor_b32 v{treg}, 32, v{treg}")
            for qd in range(4):
                out.append(f"ds_read_b64_tr_b16 {R(dst(p,t)+2*qd,2)}, v{treg} offset:{base_imm+QOFF[qd]}")
    return out
def tro_reads(dst, tps, treg):
    out = []
    for tp in tps:
        out.append(f"v_xor_b32 v{treg}, {32*tp}, v{TRO}")
        for k2 in range(2):
            for qd in range(4):
                out.append(f"ds_read_b64_tr_b16 {R(dst(tp,k2)+2*qd,2)}, v{treg} offset:{32768*k2+QOFF[qd]}")
    return out

def chain_init(A, opt):
    A(f"""
    L_chain:
    s_mov_b32 s{sH}, s{sIDX}
    v_and_b32 v20, 15, v0               ; n
    v_lshrrev_b32 v21, 4, v0            ; g
    v_and_b32 v22, 3, v0                ; n&3 (cc / c)
    v_bfe_u32 v23, v0, 2, 2             ; n>>2 (u / a)
    s_lshl_b32 s{sW1K}, s{sW}, 10
    s_lshl_b32 s{sW2K}, s{sW}, 11
    v_lshrrev_b32 v24, 5, v0
    v_lshlrev_b32 v24, 3, v24
    s_lshl_b32 s{sT0}, s{sW}, 1
    v_add_u32 v24, s{sT0}, v24
    v_xor_b32 v24, v24, v20             ; c16
    s_lshl_b32 s{sT0}, s{sW}, 4
    v_add_u32 v25, s{sT0}, v21          ; row 16w + (l>>4)
    v_lshlrev_b32 v26, 13, v25
    v_lshl_add_u32 v26, v24, 4, v26
    s_lshl_b32 s{sT0}, s{sH}, 8
    v_add_u32 v26, s{sT0}, v26
    v_lshlrev_b32 v27, 10, v25
    v_lshrrev_b32 v28, 3, v24
    v_lshl_add_u32 v27, v28, 8, v27
    v_and_b32 v28, 7, v24
    v_lshl_add_u32 v27, v28, 4, v27
    s_lshl_b32 s{sT0}, s{sH}, 17
    v_add_u32 v27, s{sT0}, v27
    s_lshl_b32 s{sT1}, s{sW}, 12
    v_lshrrev_b32 v28, 1, v21
    s_lshl_b32 s{sT0}, s{sW}, 1
    v_add_u32 v28, s{sT0}, v28
    v_lshlrev_b32 v28, 10, v28
    v_and_b32 v29, 1, v21
    v_lshl_add_u32 v28, v29, 6, v28
    v_lshl_add_u32 v28, v22, 1, v28
    s_lshr_b32 s{sT0}, s{sH}, 2
    s_lshl_b32 s{sT0}, s{sT0}, 7
    s_and_b32 s{sC}, s{sH}, 3
    s_lshl_b32 s{sC}, s{sC}, 3
    s_add_u32 s{sT0}, s{sT0}, s{sC}
    buffer_load_ushort v30, v28, {srd(M0S)}, s{sT0} offen
    buffer_load_ushort v31, v28, {srd(M0S)}, s{sT0} offen offset:32
    """)
    groups = [(WK, 0), (WK, 1), (WV, 0), (WV, 1), (WQ, 0), (WO, 0), (WQ, 1), (WO, 1)]
    def dma(gi):
        mat, par = groups[gi]
        hb = L_H0 if gi % 2 == 0 else L_H1
        for sl in range(4):
            for i in range(4):
                so = ((2*sl+par) * 64 + 4*i) * 8192 if mat != WO else (sl >> 1) * 65536 + i * 4096 + 512 * (sl & 1) + 128 * par
                A(f"s_add_u32 m0, s{sT1}, {hb + sl*16384 + i*1024}")
                A(f"s_mov_b32 s{sT0}, {so}")
                A(f"buffer_load_dwordx4 v{26 if mat != WO else 27}, {srd(mat)}, s{sT0} offen lds")
    dma(0)
    A(f"""
    v_and_b32 v28, 1, v0
    v_mov_b32 v{IDX}, 0x4444
    v_mov_b32 v29, 0xeeee
    v_cmp_eq_u32 vcc, 1, v28
    v_cndmask_b32 v{IDX}, v{IDX}, v29, vcc
    ; SCAT = (8w + a)*8192 + g*2048 + h*64 + c*16
    v_lshlrev_b32 v{SCAT}, 13, v23
    v_lshl_add_u32 v{SCAT}, v21, 11, v{SCAT}
    v_lshl_add_u32 v{SCAT}, v22, 4, v{SCAT}
    s_lshl_b32 s{sT0}, s{sW}, 16
    s_lshl_b32 s{sC}, s{sH}, 6
    s_add_u32 s{sT0}, s{sT0}, s{sC}
    v_add_u32 v{SCAT}, s{sT0}, v{SCAT}
    v_lshlrev_b32 v{MST}, 4, v21
    v_lshl_add_u32 v{MST}, v22, 2, v{MST}
    s_lshl_b32 s{sT0}, s{sH}, 8
    s_lshl_b32 s{sC}, s{sW}, 6
    s_add_u32 s{sT0}, s{sT0}, s{sC}
    v_add_u32 v{MST}, s{sT0}, v{MST}
    v_mov_b32 v29, 0x7fffff00
    v_cmp_le_u32 vcc, 12, v20
    v_cndmask_b32 v{MST}, v29, v{MST}, vcc
    v_mul_u32_u24 v{QW}, 288, v23
    v_lshl_add_u32 v{QW}, v21, 5, v{QW}
    v_lshl_add_u32 v{QW}, v22, 2, v{QW}
    s_mul_i32 s{sT0}, s{sW}, 1152
    s_add_u32 s{sT0}, s{sT0}, {L_QB}
    v_add_u32 v{QW}, s{sT0}, v{QW}
    v_mul_u32_u24 v28, 288, v21
    v_and_b32 v29, 7, v20
    v_lshl_add_u32 v{QR}, v29, 4, v28
    v_add_u32 v{QR}, {L_QB}, v{QR}
    v_lshl_add_u32 v29, v23, 1, v22
    v_and_b32 v29, 7, v29
    v_lshl_add_u32 v{KR}, v29, 4, v28
    v_add_u32 v{KR}, {L_QB+144}, v{KR}
    v_lshlrev_b32 v{OW}, 8, v21
    v_and_b32 v29, 7, v20
    v_lshl_add_u32 v{OW}, v29, 5, v{OW}
    s_lshr_b32 s{sT0}, s{sW}, 1
    s_lshl_b32 s{sT0}, s{sT0}, 10
    s_and_b32 s{sC}, s{sW}, 1
    s_lshl_b32 s{sC}, s{sC}, 4
    s_add_u32 s{sT0}, s{sT0}, s{sC}
    s_add_u32 s{sT0}, s{sT0}, {L_OB}
    v_add_u32 v{OW}, s{sT0}, v{OW}
    v_lshlrev_b32 v28, 12, v23
    v_lshl_add_u32 v28, v21, 9, v28
    v_and_b32 v29, 1, v22
    v_lshl_add_u32 v28, v29, 3, v28
    v_and_b32 v29, 1, v21
    v_lshlrev_b32 v29, 3, v29
    v_lshl_add_u32 v29, v23, 1, v29     ; f2
    v_lshrrev_b32 v32, 1, v22           ; cc>>1
    s_lshl_b32 s{sT0}, s{sW}, 2
    v_add_u32 v33, s{sT0}, v32
    v_xor_b32 v33, v33, v29
    v_lshl_add_u32 v{TRQ}, v33, 4, v28
    s_lshl_b32 s{sT0}, s{sW}, 14
    v_add_u32 v{TRQ}, s{sT0}, v{TRQ}
    s_and_b32 s{sT0}, s{sW}, 1
    s_lshl_b32 s{sT0}, s{sT0}, 3
    v_add_u32 v33, s{sT0}, v32
    v_xor_b32 v33, v33, v29
    v_lshl_add_u32 v{TRO}, v33, 4, v28
    s_lshr_b32 s{sT0}, s{sW}, 1
    s_lshl_b32 s{sT0}, s{sT0}, 14
    s_add_u32 s{sT0}, s{sT0}, {L_H1}
    v_add_u32 v{TRO}, s{sT0}, v{TRO}
    v_mov_b32 v28, 0x3f80
    v_mov_b32 v29, 0x3f800000
    v_cmp_le_u32 vcc, 8, v20
    v_cndmask_b32 v28, v28, v29, vcc
    v_and_b32 v29, 7, v20
    v_mov_b32 v33, 0
    """)
    for r, val in enumerate([0, 1, 4, 5]):
        A(f"v_cmp_eq_u32 vcc, {val}, v29\nv_cndmask_b32 v{36+r}, v33, v28, vcc")
    A(f"""
    v_lshlrev_b32 v{LB}, 4, v0
    ds_write_b128 v{LB}, v[36:39] offset:{L_SEL}
    v_add_u32 v{G0}, s{sW2K}, v{LB}
    """)
    for p, r in ((1, MA1), (2, MA2), (3, MA3)):
        A(f"v_add_u32 v{r}, {2048*p}, v{G0}\nv_and_b32 v{r}, 0x1fff, v{r}")
    dma(1)
    A("v_mov_b32 v40, -1\nv_mov_b32 v41, -1\nv_mov_b32 v42, -1\nv_mov_b32 v43, -1")
    A(f"s_lshl_b32 s{sC}, s{sH}, 13")
    for sl in range(4):
        A(f"s_add_u32 s{sT0}, s{sC}, {WS_P + sl*0x40000}")
        A(f"buffer_store_dwordx4 v[40:43], v{G0}, {srd(WS)}, s{sT0} offen sc1")
        A(f"buffer_store_dwordx4 v[40:43], v{G0}, {srd(WS)}, s{sT0} offen offset:1024 sc1")
    for sl in range(1, 4):
        A(f"s_mov_b32 s{sT0}, {WS_M + sl*8192}")
        A(f"buffer_store_dword v40, v{MST}, {srd(WS)}, s{sT0} offen sc1")
    A(f"s_lshl_b32 s{sC}, s{sH}, 14")
    for sl in range(2):
        A(f"s_add_u32 s{sT0}, s{sC}, {WS_EX + sl*8192}")
        A(f"buffer_store_dwordx4 v[40:43], v{G0}, {srd(WS)}, s{sT0} offen sc1")
        A(f"buffer_store_dwordx4 v[40:43], v{G0}, {srd(WS)}, s{sT0} offen offset:1024 sc1")
    A(f"""
    s_waitcnt vmcnt(47)
    v_lshl_or_b32 v{VM}, v31, 16, v30
    v_min_u32 v{VM}, -2, v{VM}
    s_mov_b32 s{sT0}, {WS_M}
    buffer_store_dword v{VM}, v{MST}, {srd(WS)}, s{sT0} offen sc1
    """)
    dsts = [lambda p, t: WKf(2*p, t), lambda p, t: WKf(2*p+1, t), lambda p, t: WVf(2*p, t), lambda p, t: WVf(2*p+1, t), WQ_res]
    for gi in range(6):
        n = {0: 32, 1: 16, 2: 17}.get(gi, 16)
        A(f"s_waitcnt vmcnt({n})")
        if gi == 1:
            A(f"v_mov_b32 v30, 1\ns_mov_b64 exec, 1\nbuffer_atomic_add v30, off, {srd(DBG)}, 0 offset:{DBG_CH}\ns_mov_b64 exec, -1")
        A("s_barrier")
        if gi < 5: rd = trq_reads(dsts[gi], L_H0, T0, add10000=(gi % 2 == 1))
        else: rd = tro_reads(WO_res, range(4), T0)
        for r in rd: A(r)
        A("s_waitcnt lgkmcnt(0)\ns_barrier")
        dma(gi + 2)
    import struct
    c = (128 ** -0.5) * 1.4426950408889634
    cb = struct.unpack("<I", struct.pack("<f", c))[0]
    A(f"""
    s_mov_b32 s{sC}, {cb:#x}
    s_mov_b32 s{sNC}, {cb | 0x80000000:#x}
    s_mov_b32 s{sS}, 0
    s_lshl_b32 s{sPRGKV}, s{sH}, 4
    s_add_u32 s{sPRGKV}, s{sPRGKV}, {WS_PRG + PRG_KV}
    s_lshl_b32 s{sKV}, s{sH}, 14
    s_add_u32 s{sKV}, s{sKV}, {WS_KV}
    s_mov_b32 s{sEX}, {WS_EX}
    s_add_u32 s{sKXD}, s{sW2K}, {L_KX}
    s_add_u32 s{sVXD}, s{sW2K}, {L_VX}
    """)
    wait_init(A, "c", T0)
    A(f"""
    s_mov_b32 s{sTMO}, {TMO}
    v_lshrrev_b32 v{T1}, 2, v{LB}
    L_c_wait:
    buffer_load_dword v{T0}, v{T1}, {srd(DBG)}, 0 offen sc1
    s_sub_u32 s{sTMO}, s{sTMO}, 1
    s_cmp_eq_u32 s{sTMO}, 0
    s_cbranch_scc1 L_fail
    s_waitcnt vmcnt(0)
    v_readlane_b32 s{sT0}, v{T0}, {DBG_CH//4}
    v_readlane_b32 s{sT1}, v{T0}, 0
    s_cmp_lt_u32 s{sT0}, 128
    s_cbranch_scc1 L_c_wait
    """)
    if not opt.get("no_kv_wait"):
        A(f"""
        s_mov_b32 s{sTMO}, {TMO}
        L_c_kv0:
        buffer_load_dwordx4 v[20:23], off, {srd(WS)}, s{sPRGKV} sc1
        s_sub_u32 s{sTMO}, s{sTMO}, 1
        s_cmp_eq_u32 s{sTMO}, 0
        s_cbranch_scc1 L_fail
        s_waitcnt vmcnt(0)
        v_min_u32 v20, v20, v21
        v_min_u32 v20, v20, v22
        v_readfirstlane_b32 s{sT0}, v20
        s_cmp_eq_u32 s{sT0}, 0
        s_cbranch_scc1 L_c_kv0
        """)
    A(f"s_add_u32 s{sVV}, s{sKV}, 8192")
    for x in kv_dma(True, True): A(x)
    A("s_waitcnt vmcnt(0)\ns_barrier")
    for which in range(2):
        rd = trq_reads(lambda p, t: 48 + 8*(2*p+t), L_H0, T0) if which == 0 else tro_reads(lambda tp, k2: 48 + 8*(2*tp+k2), range(4), T0)
        for r in rd: A(r)
        reg = TRQ if which == 0 else TRO
        A(f"s_lshl_b32 s{sT0}, s{sW}, 14\ns_add_u32 s{sT0}, s{sT0}, {L_H0 if which == 0 else L_H1}")
        A("s_waitcnt lgkmcnt(0)\ns_barrier")
        A(f"v_add_u32 v{reg}, s{sT0}, v{LB}")
        for i in range(16): A(f"ds_write_b128 v{reg}, v[{48+4*i}:{51+4*i}] offset:{1024*i}")
        A("s_waitcnt lgkmcnt(0)")
    for r in wq_stage([0, 1, 2]): A(r)
    A(f"""
    v_lshlrev_b32 v{WARM}, 2, v{LB}
    s_mov_b32 s{sMc}, {WS_M}
    s_mov_b32 s{sMn}, {WS_M + 8192}
    s_mov_b32 s{sMr}, {WS_M + 3*8192}
    s_mov_b32 s{sPc}, {WS_P}
    s_add_u32 s{sPc2}, s{sPc}, 0x8000
    s_lshl_b32 s{sT0}, s{sH}, 13
    s_add_u32 s{sPr}, s{sT0}, {WS_P + 3*0x40000}
    s_add_u32 s{sKV}, s{sKV}, {32*16384}
    s_add_u32 s{sVV}, s{sKV}, 8192
    s_lshl_b32 s{sT0}, s{sW}, 12
    s_add_u32 s{sWRM}, s{sKV}, s{sT0}
    s_add_u32 s{sWRM}, s{sWRM}, {32*16384}
    s_add_u32 s{sPGA}, s{sPRGKV}, 12
    s_cmp_lt_u32 s{sT1}, 32
    s_cbranch_scc1 L_step_slow
    """)

def wq_stage(ps):
    return [f"ds_read_b128 {R(WQ_stg(p,t)+4*hf,4)}, v{TRQ} offset:{1024*(4*p+2*t+hf)}" for p in ps for t in range(2) for hf in range(2)]
def wo_stage(idx):
    return [f"ds_read_b128 {R(WOS[i]+4*hf,4)}, v{TRO} offset:{1024*(2*i+hf)}" for i in idx for hf in range(2)]
def zero_accs():
    return [f"v_mov_b64 v[{r}:{r+1}], 0" for r in list(range(QA, QA+16, 2)) + list(range(VA, VA+8, 2))]
def sched(A, mf_list, gaps):
    for x in gaps.get(-1, []): A(x)
    for i, m in enumerate(mf_list):
        A(m)
        for x in gaps.get(i, []): A(x)
    assert max(gaps) < len(mf_list)
def spread(gaps, start, items, per=1, step=1, front=False):
    items = list(items); i = start
    while items:
        chunk, items = items[:per], items[per:]
        gaps[i] = (chunk + gaps.get(i, [])) if front else (gaps.get(i, []) + chunk)
        i += step
    return i

def kv_dma(k, v):
    out = []
    if k:
        out += [f"s_mov_b32 m0, s{sKXD}", f"buffer_load_dwordx4 v{G0}, {srd(WS)}, s{sKV} offen sc1 lds",
                f"buffer_load_dwordx4 v{G0}, {srd(WS)}, s{sKV} offen offset:1024 sc1 lds"]
    if v:
        out += [f"s_mov_b32 m0, s{sVXD}", f"buffer_load_dwordx4 v{G0}, {srd(WS)}, s{sVV} offen sc1 lds",
                f"buffer_load_dwordx4 v{G0}, {srd(WS)}, s{sVV} offen offset:1024 sc1 lds"]
    return out

def ld2(b, so):
    return [f"buffer_load_dwordx4 v[{b}:{b+3}], v{G0}, {srd(WS)}, s{so} offen sc1",
            f"buffer_load_dwordx4 v[{b+4}:{b+7}], v{G0}, {srd(WS)}, s{so} offen offset:1024 sc1"]
def chk8(b, t0, t1):
    return [f"v_max3_u32 v{t0}, v{b}, v{b+1}, v{b+2}", f"v_max3_u32 v{t1}, v{b+3}, v{b+4}, v{b+5}",
            f"v_max3_u32 v{t0}, v{t0}, v{b+6}, v{b+7}", f"v_max_u32 v{t0}, v{t0}, v{t1}", f"v_cmp_eq_u32 vcc, -1, v{t0}"]
def retry(A, b, so, back, pre=()):
    for x in pre: A(x)
    A("s_mov_b64 exec, vcc")
    for x in ld2(b, so): A(x)
    A(f"""
    s_mov_b64 exec, -1
    s_sub_u32 s{sTMO}, s{sTMO}, 1
    s_cmp_eq_u32 s{sTMO}, 0
    s_cbranch_scc1 L_fail
    s_branch {back}
    """)

def fin(acc, d0, d1):
    return [f"v_add_f32 v{acc}, v{acc}, v{acc+1}", f"v_add_f32 v{acc+4}, v{acc+4}, v{acc+5}",
            f"v_add_f32 v{acc+2}, v{acc+2}, v{acc+3}", f"v_add_f32 v{acc+6}, v{acc+6}, v{acc+7}",
            f"v_cvt_pk_bf16_f32 v{d0}, v{acc}, v{acc+4}", f"v_cvt_pk_bf16_f32 v{d1}, v{acc+2}, v{acc+6}"]
def vfin():
    a = VA
    return [f"v_add_f32 v{a}, v{a}, v{a+1}", f"v_add_f32 v{a+2}, v{a+2}, v{a+3}",
            f"v_add_f32 v{a+4}, v{a+4}, v{a+5}", f"v_add_f32 v{a+6}, v{a+6}, v{a+7}",
            f"v_cvt_pk_bf16_f32 v{VM}, v{a}, v{a+2}", f"v_cvt_pk_bf16_f32 v{VM+1}, v{a+4}, v{a+6}"]
def mem_reads():
    out = []
    for ks in range(2, 8):
        out.append(f"ds_read_b128 v[{MEM+4*ks}:{MEM+4*ks+3}], v{[0,MA1,MA2,MA3][ks>>1]} offset:{1024*(ks&1)}")
    return out
def ex_store(): return f"buffer_store_dword v{VM}, v{MST}, {srd(WS)}, s{sEX} offen sc1"
def mem_writes(): return [f"ds_write_b128 v{G0}, v[{MEM}:{MEM+3}]", f"ds_write_b128 v{G0}, v[{MEM+4}:{MEM+7}] offset:1024"]

STAMP_REGS = list(range(12, 56, 2)) + list(range(86, 98, 2))
class Stamps:
    def __init__(self, A, opt): self.A, self.on, self.names, self.probe = A, opt.get("trace"), [], opt.get("probe")
    def active(self, name): return self.on and (not self.probe or name in self.probe)
    def __call__(self, name):
        if not self.active(name): return
        r = STAMP_REGS[len(self.names)]; self.names.append(name)
        self.A(f"s_memtime s[{r}:{r+1}]")

def chain_step(A, opt, slow):
    sc = " sc1" if slow else ""
    tg = "s" if slow else "f"
    ST = Stamps(A, opt)
    def STI(name):
        if not ST.active(name): return []
        r = STAMP_REGS[len(ST.names)]; ST.names.append(name); return [f"s_memtime s[{r}:{r+1}]"]
    A(f"L_step_{'slow' if slow else 'fast'}:")
    dup = opt.get("dup", 0)
    if opt.get("tot"): A(f"s_cmp_lg_u32 s{sS}, 3\ns_cbranch_scc1 L_nt{tg}\ns_memtime s[98:99]\nL_nt{tg}:")
    def nops(n):
        while n > 0:
            k = min(16, max(1, n // 4)); A(f"s_nop {k-1}"); n -= 4*k
    for x in ld2(MEM, sMc): A(x)
    A(f"s_mov_b32 s{sTMO}, {TMO}")
    for x in zero_accs(): A(x)
    if dup:
        nops(dup)
        for x in ld2(MEM, sMc): A(x)
    for _ in range(opt.get("gwarm", 0)): A(f"v_mov_b32 v{TA}, 0")
    A(f"L_gw{tg}:")
    A(f"s_waitcnt vmcnt({2 if dup else 0}) lgkmcnt(0)")
    ST("gret")
    for x in chk8(MEM, TA, TB) + mem_writes(): A(x)
    A(f"s_cbranch_vccnz L_gr{tg}")
    own = [q_(0,0), q_(0,1), q_(1,0), q_(1,1), k_(0,0), k_(0,1), k_(1,0), k_(1,1), v_(0,0), v_(0,1), v_(1,0), v_(1,1)]
    qs = [q_(ks, t) for ks in range(2, 8) for t in range(2)]
    ks_ = [k_(ks, t) for t in range(2) for ks in range(2, 8)]
    g = {}
    sk = opt.get("skip", "")
    mr = mem_reads()
    g[3] = ["s_waitcnt lgkmcnt(0)", "s_barrier"] + STI("pastA") + mr[:1]
    spread(g, 4, mr[1:])
    w7 = wq_stage([3])
    spread(g, 9, w7)
    g[11] += ["s_waitcnt lgkmcnt(7)"] + STI("own")
    g[13] = ["s_waitcnt lgkmcnt(4)"]
    g[14] = ["s_waitcnt vmcnt(0)"] if dup else []
    g[15] = []
    kx = [f"ds_read_b128 v[{KX+4*i}:{KX+4*i+3}], v{LB} offset:{L_KX+1024*i}" for i in range(8)]
    spread(g, 16, kx[:4])
    spread(g, 20, kx[4:])
    g[21] += ["s_waitcnt lgkmcnt(6)"]
    if "e" not in sk: g[14] += [ex_store()]
    if "w" not in sk: g[15] += [f"buffer_load_dword v{PG}, v{WARM}, {srd(WS)}, s{sWRM} offen sc1"]
    if "p" not in sk: g[17] += [f"buffer_load_dword v{PG}, off, {srd(WS)}, s{sPGA} sc1"]
    g[23] += STI("qdone")
    f = fin(QA, QA+1, QA+3)
    g[24] = ["s_nop 2"]; g[25] = ["s_nop 1", f[0]]; g[26] = [f[2], f[1]]; g[27] = [f[3], f[4]]; g[28] = [f[5]]
    g[29] = [f"ds_write2_b32 v{QW}, v{QA+1}, v{QA+3} offset0:0 offset1:4"]
    fk = fin(KA, KA+1, KA+3)
    g[30] = ["s_nop 2"]; g[31] = ["s_nop 2"]; g[32] = [fk[0]]
    qo = [f"ds_read_b128 v[{QO+4*j}:{QO+4*j+3}], v{QR} offset:{1152*j}" for j in range(4)]
    g[33] = ["s_waitcnt lgkmcnt(0)", "s_barrier"] + STI("pastB") + [fk[2]]
    g[34] = qo[:1]; g[35] = qo[1:2] + STI("kdone")
    sched(A, own + qs + ks_, g)
    vs = [v_(ks, t) for ks in range(2, 8) for t in range(2)]
    sx = [mf(SX + 4*kt, KX + 16*kt + 4*j, QO + 4*j, "0" if j == 0 else None) for kt in range(2) for j in range(4)]
    smm = [mf(SM, KO + 4*j, QO + 4*j, "0" if j == 0 else None) for j in range(4)]
    ko = [f"ds_read_b128 v[{KO+4*j}:{KO+4*j+3}], v{KR} offset:{1152*j}" for j in range(4)]
    vx = [f"ds_read_b128 v[{VX+4*t}:{VX+4*t+3}], v{G0} offset:{L_VX+1024*t}" for t in range(2)]
    s = SX
    xs = [f"v_max3_f32 v{TA}, v{s}, v{s+1}, v{s+2}", f"v_max_f32 v{TA}, v{TA}, v{s+3}",
          f"v_max3_f32 v{TB}, v{s+4}, v{s+5}, v{s+6}", f"v_max3_f32 v{TA}, v{TA}, v{TB}, v{s+7}", f"v_mov_b32 v{TB}, v{TA}",
          f"v_permlane16_swap_b32 v{TA}, v{TB}", f"v_max_f32 v{TA}, v{TA}, v{TB}"]
    kd = kv_dma(True, False); vd = kv_dma(False, True)
    g = {}
    seq = vs[:3] + sx + vs[3:4] + smm + vs[4:12]
    g[0] = [qo[2], "s_nop 1"]
    g[1] = [qo[3], "s_nop 0", fk[1], fk[3], fk[4], fk[5], f"ds_write2_b32 v{QW}, v{KA+1}, v{KA+3} offset0:36 offset1:40"] + STI("kw")
    g[2] = ["s_waitcnt lgkmcnt(1)"]
    g[6] = ["s_waitcnt lgkmcnt(0)", "s_barrier"] + STI("pastC") + ko[:1]
    g[7] = ko[1:2]; g[8] = ko[2:3]; g[9] = ko[3:4]
    g[10] = [vx[0], xs[0], xs[1]]
    g[11] = [vx[1], "s_waitcnt lgkmcnt(5)"] + STI("KO") + [f"v_mov_b32 v{ONES}, 0x3f803f80"]
    g[12] = ["s_waitcnt lgkmcnt(4)", f"v_mov_b32 v{ONES+1}, 0x3f803f80", f"v_mov_b64 v[{ONES+2}:{ONES+3}], v[{ONES}:{ONES+1}]"]
    g[13] = ["s_waitcnt lgkmcnt(3)", xs[2], xs[3]]
    g[14] = ["s_waitcnt lgkmcnt(2)", xs[4]]
    g[15] = [kd[0], xs[5], xs[6]]
    g[16] = [kd[1], "s_nop 0", f"v_mov_b32 v{PMA+1}, 0"]
    g[17] = [kd[2], f"v_max3_f32 v{TB}, v{SM}, v{SM+1}, v{SM+2}", f"v_max3_f32 v{TA}, v{TA}, v{TB}, v{SM+3}", f"v_mov_b32 v{TB}, v{TA}"]
    g[18] = ["s_nop 0", f"v_permlane32_swap_b32 v{TA}, v{TB}", f"v_max_f32 v{TA}, v{TA}, v{TB}", f"v_mul_f32 v{TA}, s{sNC}, v{TA}"] + STI("max")
    fm = [f"v_fma_f32 v{s+i}, v{s+i}, s{sC}, v{TA}" for i in range(8)] + [f"v_fma_f32 v{SM+i}, v{SM+i}, s{sC}, v{TA}" for i in range(2)]
    ex = [f"v_exp_f32 v{s+i}, v{s+i}" for i in range(8)] + [f"v_exp_f32 v{SM+i}, v{SM+i}" for i in range(2)]
    cv = [f"v_cvt_pk_bf16_f32 v{PX+i}, v{s+2*i}, v{s+2*i+1}" for i in range(4)]
    ws_ = wo_stage(range(8))
    g[18] += fm[:4]
    g[19] = ["s_waitcnt lgkmcnt(0)", vd[0]] + fm[4:8]
    g[20] = [vd[1], ws_[0]] + ex[:3]
    g[21] = [vd[2], ws_[1]] + ex[3:6]
    g[22] = [ws_[2]] + ex[6:8] + fm[8:10]
    g[23] = [ws_[3]] + STI("vdone") + cv + ex[8:10]
    sched(A, seq, g)
    ST("exp")
    vf = vfin()
    pv = [mf(LX, ONES, PX, "0"), mf(OX, VX, PX, "0"), mf(OX + 4, VX + 4, PX, "0"), mf16(LX, ONES, PMA), mf16(OX, VM, PMA), mf16(OX + 4, VM, PMB),
          f"v_mfma_f32_32x32x8_bf16 v[{MEM}:{MEM+15}], v[{ZZ}:{ZZ+1}], v[{ZZ}:{ZZ+1}], 0",
          f"v_mfma_f32_32x32x8_bf16 v[{MEM+16}:{MEM+31}], v[{ZZ}:{ZZ+1}], v[{ZZ}:{ZZ+1}], 0"]
    g = {0: [f"v_cvt_pk_bf16_f32 v{PMA}, v{SM}, v{SM+1}", vf[0], vf[1]],
         1: [vf[2], vf[3], vf[4]],
         2: [vf[5], f"v_cvt_pk_bf16_f32 v{PMB+1}, v{SM}, v{SM+1}"],
         3: [f"v_mov_b32 v{PMB}, 0", f"v_mov_b64 v[{ZZ}:{ZZ+1}], 0"],
         4: [ws_[4], f"v_mov_b64 v[{NEG}:{NEG+1}], -1"],
         5: STI("pvm") + [ws_[5], f"v_mov_b64 v[{NEG+2}:{NEG+3}], -1"],
         6: [ws_[6], f"v_rcp_f32 v{TA}, v{LX}", ws_[7]]}
    sched(A, pv[:7], g)
    for i in range(8): A(f"v_mul_f32 v{OX+i}, v{OX+i}, v{TA}")
    for i in range(4): A(f"v_cvt_pk_bf16_f32 v{SM+i}, v{OX+i}, v{OX+4+i}")
    A(f"ds_write_b128 v{OW}, v[{SM}:{SM+3}]")
    A(pv[7])
    ST("preD")
    A(f"buffer_store_dwordx4 v[{NEG}:{NEG+3}], v{G0}, {srd(WS)}, s{sPr} offen{sc}")
    A(f"buffer_store_dword v{NEG}, v{MST}, {srd(WS)}, s{sMr} offen{sc}")
    A("s_waitcnt lgkmcnt(0)\ns_barrier")
    ST("pastD")
    A(f"ds_read_b128 v[{OO}:{OO+3}], v{LB} offset:{L_OB}\nds_read_b128 v[{OO+4}:{OO+7}], v{LB} offset:{L_OB+1024}")
    A(f"buffer_store_dwordx4 v[{NEG}:{NEG+3}], v{G0}, {srd(WS)}, s{sPr} offen offset:1024{sc}")
    A(ws_[8]); A(ws_[9])
    A("s_waitcnt lgkmcnt(3)")
    ST("wo0")
    def wo(tau, k2): return sm(MEM + 4*tau, OO + 4*k2, WO_res(tau, k2) if tau < 4 else WOS[2*(tau-4)+k2])
    def wfin(tau):
        a = MEM + 4*tau; d = MEM + 16*(tau >> 2) + (tau & 3)
        return [f"v_add_f32 v{a}, v{a}, v{a+1}", f"v_add_f32 v{a+2}, v{a+2}, v{a+3}", f"v_cvt_pk_bf16_f32 v{d}, v{a}, v{a+2}"]
    g = {0: ["s_waitcnt lgkmcnt(2)"], 1: [ws_[10], "s_nop 0"], 2: [ws_[11], "s_nop 0"], 3: [ws_[12], "s_nop 0"]}
    for tau in range(6):
        w = wfin(tau); g[2*tau+4] = ["s_nop 0", w[0]]; g[2*tau+5] = ["s_nop 0"] + w[1:]
    g[4][0] = ws_[13]; g[5][0] = ws_[14]; g[6][0] = ws_[15]
    g[11][0] = "s_waitcnt lgkmcnt(0)"
    g[12] = [f"buffer_store_dwordx4 v[{MEM}:{MEM+3}], v{SCAT}, {srd(WS)}, s{sPc} offen{sc}"] + STI("scat0") + g[12][1:]
    sched(A, [wo(tau, k2) for tau in range(8) for k2 in range(2)], g)
    for x in wfin(6) + wfin(7): A(x)
    A(f"buffer_store_dwordx4 v[{MEM+16}:{MEM+19}], v{SCAT}, {srd(WS)}, s{sPc2} offen{sc}")
    ST("scat")
    SEL, RA, RP = MEM + 4, MEM + 8, MEM + 24
    A(f"ds_read_b128 v[{SEL}:{SEL+3}], v{LB} offset:{L_SEL}")
    for x in wq_stage([0, 1, 2]): A(x)
    A(f"s_lshl_b32 s{sT0}, s{sH}, 13\ns_add_u32 s{sPr}, s{sPc}, s{sT0}")
    nops(opt.get("rdelay", 0))
    ST("prered")
    for x in ld2(RP, sPr): A(x)
    A(f"""
    s_mov_b32 s{sMr}, s{sMc}
    s_mov_b32 s{sMc}, s{sMn}
    s_add_u32 s{sMn}, s{sMn}, 8192
    s_and_b32 s{sMn}, s{sMn}, 0x7fff
    s_add_u32 s{sPc}, s{sPc}, 0x40000
    s_and_b32 s{sPc}, s{sPc}, 0xfffff
    s_or_b32 s{sPc}, s{sPc}, {WS_P}
    s_add_u32 s{sPc2}, s{sPc}, 0x8000
    s_add_u32 s{sKV}, s{sKV}, {32*16384}
    s_add_u32 s{sVV}, s{sKV}, 8192
    s_add_u32 s{sEX}, s{sEX}, 8192
    s_cmp_lt_u32 s{sS}, 61
    s_cselect_b32 s{sT0}, {32*16384}, 0
    s_add_u32 s{sWRM}, s{sWRM}, s{sT0}
    """)
    if dup:
        nops(dup)
        for x in ld2(RP, sPr): A(x)
    for _ in range(opt.get("rwarm", 0)): A(f"v_mov_b32 v{TA}, 0")
    A(f"L_rw{tg}:")
    A(f"s_waitcnt vmcnt({2 if dup else 0}) lgkmcnt(0)")
    ST("rret")
    for x in chk8(RP, TA, TB): A(x)
    A(mf(RA, SEL, RP, "0")); A(mf(RA, SEL, RP + 4))
    A(f"s_cbranch_vccnz L_rr{tg}")
    A(f"v_readfirstlane_b32 s{sT1}, v{PG}")
    A(f"""
    v_add_f32_dpp v{RA}, v{RA}, v{RA} row_shr:4 row_mask:0xf bank_mask:0xf
    v_add_f32_dpp v{RA+1}, v{RA+1}, v{RA+1} row_shr:4 row_mask:0xf bank_mask:0xf
    v_add_f32_dpp v{RA}, v{RA}, v{RA} row_shr:8 row_mask:0xf bank_mask:0xf
    v_add_f32_dpp v{RA+1}, v{RA+1}, v{RA+1} row_shr:8 row_mask:0xf bank_mask:0xf
    v_cvt_pk_bf16_f32 v{VM}, v{RA}, v{RA+1}
    buffer_store_dword v{VM}, v{MST}, {srd(WS)}, s{sMc} offen{sc}
    """)
    ST("red")
    if not opt.get("no_kv_wait"):
        A(f"""
        s_add_u32 s{sT0}, s{sS}, 3
        s_lshr_b32 s{sT0}, s{sT0}, 2
        s_min_u32 s{sT0}, s{sT0}, 15
        s_cmp_gt_u32 s{sT1}, s{sT0}
        s_cbranch_scc0 L_kvw{tg}
        L_kvok{tg}:
        """)
    A(f"""
    s_add_u32 s{sS}, s{sS}, 1
    s_add_u32 s{sT0}, s{sS}, 3
    s_and_b32 s{sT0}, s{sT0}, 3
    s_lshl_b32 s{sT0}, s{sT0}, 2
    s_add_u32 s{sPGA}, s{sT0}, s{sPRGKV}
    """)
    nops(opt.get("gdelay", 0))
    ST("end")
    if opt.get("trace"):
        A("s_waitcnt lgkmcnt(0)")
        for i in range(len(ST.names)): A(f"v_writelane_b32 v{TA}, s{STAMP_REGS[i]}, {i}")
        if not ST.probe: open("stamps.txt", "w").write(" ".join(ST.names))
        A(f"""s_lshl_b32 s{sT0}, s{sS}, 14
        s_lshl_b32 s{sT1}, s{sH}, 9
        s_add_u32 s{sT0}, s{sT0}, s{sT1}
        s_lshl_b32 s{sT1}, s{sW}, 7
        s_add_u32 s{sT0}, s{sT0}, s{sT1}
        s_add_u32 s{sT0}, s{sT0}, {WS_TRC - 16384}
        v_lshrrev_b32 v{TB}, 2, v{LB}
        s_mov_b32 exec_hi, 0
        buffer_store_dword v{TA}, v{TB}, {srd(WS)}, s{sT0} offen
        s_mov_b64 exec, -1""")
    A(f"s_cmp_lt_u32 s{sS}, 63\ns_cbranch_scc1 L_step_{'slow' if slow else 'fast'}\ns_branch L_last")
    A(f"L_gr{tg}:")
    retry(A, MEM, sMc, f"L_gw{tg}")
    A(f"L_rr{tg}:")
    retry(A, RP, sPr, f"L_rw{tg}")
    if not opt.get("no_kv_wait"):
        A(f"""
        L_kvw{tg}:
        buffer_load_dword v{PG}, off, {srd(WS)}, s{sPGA} sc1
        s_sub_u32 s{sTMO}, s{sTMO}, 1
        s_cmp_eq_u32 s{sTMO}, 0
        s_cbranch_scc1 L_fail
        s_waitcnt vmcnt(0)
        v_readfirstlane_b32 s{sT1}, v{PG}
        s_cmp_gt_u32 s{sT1}, s{sT0}
        s_cbranch_scc0 L_kvw{tg}
        s_branch L_kvok{tg}
        """)

def chain_last(A, opt):
    A("L_last:")
    A(ex_store())
    if opt.get("tot"):
        A(f"""
        s_memtime s[100:101]
        s_waitcnt lgkmcnt(0)
        s_sub_u32 s100, s100, s98
        v_mov_b32 v{TA}, s100
        s_mov_b64 exec, 1
        buffer_store_dword v{TA}, off, {srd(DBG)}, 0 offset:56
        """)
    A("s_branch L_end")

def chain(A, opt):
    chain_init(A, opt)
    chain_step(A, opt, False)
    chain_step(A, opt, True)
    chain_last(A, opt)
```

```python
from asmlib import *
from layout import *
KNAME = "gated_mix__memory_aug_recurrent_mem_tr__swiglu_ffn__prompt_kernel"
sW = 3
WS, DBG, XS, WQ, WK, WV, WO, M0S, WG, WU, WD, GW, OUT = (4, 8, 12, 16, 20, 24, 28, 32, 36, 40, 44, 48, 52)
sXCC, sIDX, sGRP, sTMO = 56, 57, 58, 59
def srd(b): return f"s[{b}:{b+3}]"
TMO = 4000000

def weave(A, mf, oth, per=2, lead=0):
    oth = list(oth)
    for _ in range(lead):
        if oth: A(oth.pop(0))
    for m in mf:
        A(m)
        for _ in range(per):
            if oth: A(oth.pop(0))
    for o in oth: A(o)

def prologue(A, opt):
    A(f"""
    s_cmp_ge_u32 s2, 256
    s_cbranch_scc1 L_end
    s_load_dwordx2 s[{WS}:{WS+1}], s[0:1], 112
    s_load_dwordx2 s[{DBG}:{DBG+1}], s[0:1], 104
    s_load_dwordx2 s[{XS}:{XS+1}], s[0:1], 0
    s_load_dwordx2 s[{M0S}:{M0S+1}], s[0:1], 8
    s_load_dwordx2 s[{WQ}:{WQ+1}], s[0:1], 16
    s_load_dwordx2 s[{WK}:{WK+1}], s[0:1], 24
    s_load_dwordx2 s[{WV}:{WV+1}], s[0:1], 32
    s_load_dwordx2 s[{WO}:{WO+1}], s[0:1], 40
    s_load_dwordx2 s[{WG}:{WG+1}], s[0:1], 64
    s_load_dwordx2 s[{WU}:{WU+1}], s[0:1], 72
    s_load_dwordx2 s[{WD}:{WD+1}], s[0:1], 80
    s_load_dwordx2 s[{GW}:{GW+1}], s[0:1], 88
    s_load_dwordx2 s[{OUT}:{OUT+1}], s[0:1], 96
    s_getreg_b32 s{sXCC}, hwreg(HW_REG_XCC_ID)
    s_and_b32 s{sXCC}, s{sXCC}, 7
    v_lshrrev_b32 v1, 6, v0
    v_readfirstlane_b32 s{sW}, v1
    """)
    if opt.get("fake_xcc"):
        A(f"s_mul_i32 s{sXCC}, s2, 37\ns_lshr_b32 s{sXCC}, s{sXCC}, 3\ns_and_b32 s{sXCC}, s{sXCC}, 7\ns_and_b32 s60, s2, 3\ns_cmp_eq_u32 s60, 1\ns_cselect_b32 s{sXCC}, 5, s{sXCC}")
    sizes = {WS: 0x10000000, DBG: 256, XS: 2097152, M0S: 8192, WQ: 4194304, WK: 4194304, WV: 4194304, WO: 4194304,
             WG: 512*1376*2, WU: 512*1376*2, WD: 512*1376*2, GW: 1024, OUT: 2097152}
    for b, n in sizes.items():
        A(f"s_mov_b32 s{b+2}, {n}\ns_mov_b32 s{b+3}, 0x20000")
    A(f"""
    s_waitcnt lgkmcnt(0)
    s_cmp_lg_u32 s{sW}, 0
    s_cbranch_scc1 L_noticket
    s_lshl_b32 s60, s{sXCC}, 2
    v_mov_b32 v4, 1
    s_mov_b64 exec, 1
    buffer_atomic_add v4, off, {srd(DBG)}, s60 sc0
    s_mov_b64 exec, -1
    L_noticket:
    s_cmp_lg_u32 s2, 0
    s_cbranch_scc1 L_nozero
    v_lshlrev_b32 v2, 4, v0
    v_mov_b32 v8, 0
    v_mov_b32 v9, 0
    v_mov_b32 v10, 0
    v_mov_b32 v11, 0
    s_mov_b32 s60, {WS_PRG}
    buffer_store_dwordx4 v[8:11], v2, {srd(WS)}, s60 offen sc1
    L_nozero:
    s_waitcnt vmcnt(0)
    s_cmp_lg_u32 s{sW}, 0
    s_cbranch_scc1 L_noticket2
    v_mov_b32 v5, 0
    s_mov_b64 exec, 1
    ds_write_b32 v5, v4
    s_mov_b64 exec, -1
    s_waitcnt lgkmcnt(0)
    L_noticket2:
    s_barrier
    v_mov_b32 v5, 0
    ds_read_b32 v4, v5
    s_cmp_lg_u32 s2, 0
    s_cbranch_scc1 L_nozero2
    v_mov_b32 v6, 1
    s_mov_b64 exec, 1
    buffer_store_dword v6, off, {srd(DBG)}, 0 offset:{DBG_INIT} sc1
    s_mov_b64 exec, -1
    L_nozero2:
    s_waitcnt lgkmcnt(0)
    v_readfirstlane_b32 s{sIDX}, v4
    s_mov_b32 s{sGRP}, s{sXCC}
    s_barrier
    v_and_b32 v0, 63, v0
    s_cmp_lt_u32 s{sIDX}, 32
    s_cbranch_scc0 L_overflow
    L_role:
    """)

def overflow(A, opt):
    A(f"""
    L_overflow:
    s_mov_b32 s{sTMO}, {TMO}
    v_lshlrev_b32 v2, 2, v0
    L_ovf_wait:
    buffer_load_dword v3, v2, {srd(DBG)}, 0 offen sc1
    s_sub_u32 s{sTMO}, s{sTMO}, 1
    s_cmp_eq_u32 s{sTMO}, 0
    s_cbranch_scc1 L_fail
    s_waitcnt vmcnt(0)
    s_mov_b32 s60, 0
    """)
    for x in range(8):
        A(f"v_readlane_b32 s{62+x}, v3, {x}\ns_add_u32 s60, s60, s{62+x}")
    A(f"""
    s_cmp_lt_u32 s60, 256
    s_cbranch_scc1 L_ovf_wait
    s_cmp_lg_u32 s{sW}, 0
    s_cbranch_scc1 L_ovf_t
    v_mov_b32 v4, 1
    v_mov_b32 v5, 0
    s_mov_b64 exec, 1
    buffer_atomic_add v4, off, {srd(DBG)}, 0 offset:{DBG_OVF} sc0
    s_waitcnt vmcnt(0)
    ds_write_b32 v5, v4
    s_mov_b64 exec, -1
    s_waitcnt lgkmcnt(0)
    L_ovf_t:
    s_barrier
    v_mov_b32 v5, 0
    ds_read_b32 v4, v5
    s_waitcnt lgkmcnt(0)
    v_readfirstlane_b32 s61, v4
    s_barrier
    """)
    for x in range(8):
        A(f"""
        s_min_u32 s70, s{62+x}, 32
        s_sub_u32 s71, 32, s70
        s_mov_b32 s{sGRP}, {x}
        s_add_u32 s{sIDX}, s70, s61
        s_cmp_lt_u32 s61, s71
        s_cbranch_scc1 L_role
        s_sub_u32 s61, s61, s71
        """)
    A("s_branch L_end")

def wait_init(A, tag, vt=3):
    A(f"""
    s_mov_b32 s{sTMO}, {TMO}
    L_wi_{tag}:
    buffer_load_dword v{vt}, off, {srd(DBG)}, 0 offset:{DBG_INIT} sc1
    s_sub_u32 s{sTMO}, s{sTMO}, 1
    s_cmp_eq_u32 s{sTMO}, 0
    s_cbranch_scc1 L_fail
    s_waitcnt vmcnt(0)
    v_readfirstlane_b32 s85, v{vt}
    s_cmp_eq_u32 s85, 0
    s_cbranch_scc1 L_wi_{tag}
    """)

def epilogue(A):
    A(f"""
    L_fail:
    s_waitcnt vmcnt(0) lgkmcnt(0)
    s_mov_b64 exec, -1
    s_lshl_b32 s60, s{sGRP}, 8
    s_add_u32 s60, s60, s{sIDX}
    s_add_u32 s60, s60, 0x10000
    v_mov_b32 v4, s60
    s_mov_b64 exec, 1
    buffer_store_dword v4, off, {srd(DBG)}, 0 offset:{DBG_ERR} sc1
    L_end:
    s_endpgm
    """)
```

```python
MB = 1 << 20
WS_M   = 0x000000
WS_EX  = 0x080000
WS_PRG = 0x010000
WS_P   = 0x100000
WS_KV  = 0x200000
WS_KM  = WS_KV + 32 * MB
WS_OH  = WS_KM + 16 * MB
OH_TT  = 176 * 1024
WS_TRC = WS_OH + 24 * MB
PRG_KV = 0x000
PRG_KM = 0x400
PRG_O  = 0x800
PRG_H  = 0xA00
PRG_BYTES = 0x1000
DBG_CNT = 0
DBG_OVF = 32
DBG_INIT = 36
DBG_CH  = 40
DBG_ERR = 60
```

```python
from common import *
import struct
def f2u(x): return struct.unpack("<I", struct.pack("<f", x))[0]
def mf(acc, a, b, c=None): return f"v_mfma_f32_16x16x32_bf16 {R(acc,4)}, {R(a,4)}, {R(b,4)}, {R(acc,4) if c is None else c}"
def mf16(acc, a, b, c=None): return f"v_mfma_f32_16x16x16_bf16 {R(acc,4)}, {R(a,2)}, {R(b,2)}, {R(acc,4) if c is None else c}"
H0, H1 = 0x8000, 0x18000
sT0, sT1, sT2, sT3 = 73, 74, 75, 76

def lane_decode(A):
    A("""
    v_and_b32 v20, 15, v0               ; n
    v_lshrrev_b32 v21, 4, v0            ; g
    v_and_b32 v22, 3, v0                ; n&3
    v_bfe_u32 v23, v0, 2, 2             ; n>>2
    """)

def x_dma(A, vXG, sSrc, lds_base_sgpr):
    for i in range(8):
        A(f"s_add_u32 m0, s{lds_base_sgpr}, {1024*i - 64*i}")
        A(f"buffer_load_dwordx4 v{vXG}, {srd(XS)}, s{sSrc} offen offset:{64*i} lds")

def load_weights(A, mats, rs, sCol, dst, extra_before, vD0=26, vD1=27, vTR=28, vT=29):
    A(f"""
    s_lshl_b32 s{sT0}, s{sW}, 4
    v_add_u32 v24, s{sT0}, v21
    s_mov_b32 s{sT0}, {rs}
    v_mul_lo_u32 v24, v24, s{sT0}
    v_add_u32 v24, s{sCol}, v24
    v_lshlrev_b32 v25, 1, v21
    v_xor_b32 v25, v25, v20
    v_lshl_add_u32 v{vD0}, v25, 4, v24
    v_xor_b32 v25, 8, v25
    v_lshl_add_u32 v{vD1}, v25, 4, v24
    v_lshl_add_u32 v24, v21, 3, v23
    v_lshlrev_b32 v24, 8, v24
    v_and_b32 v25, 1, v22
    v_lshl_add_u32 v24, v25, 3, v24
    v_and_b32 v25, 1, v21
    v_lshlrev_b32 v25, 3, v25
    v_lshl_add_u32 v25, v23, 1, v25
    v_lshrrev_b32 v{vT}, 1, v22
    s_lshl_b32 s{sT0}, s{sW}, 2
    v_add_u32 v{vT}, s{sT0}, v{vT}
    v_xor_b32 v25, v25, v{vT}
    v_lshl_add_u32 v{vTR}, v25, 4, v24
    s_lshl_b32 s{sT1}, s{sW}, 12
    """)
    groups = [(mi, hf) for mi in range(len(mats)) for hf in range(2)]
    def dma(gi):
        mi, hf = groups[gi]
        hb = H0 if gi % 2 == 0 else H1
        for ch in range(4):
            for i in range(4):
                A(f"s_add_u32 m0, s{sT1}, {hb + ch*16384 + i*1024}")
                A(f"s_mov_b32 s{sT0}, {((4*hf+ch)*64 + 4*i) * rs}")
                A(f"buffer_load_dwordx4 v{vD0 if i < 2 else vD1}, {srd(mats[mi])}, s{sT0} offen lds")
    dma(0); dma(1)
    for gi, (mi, hf) in enumerate(groups):
        A(f"s_waitcnt vmcnt({16 if gi + 1 < len(groups) else 0})\ns_barrier")
        for t in range(2):
            A(f"v_xor_b32 v{vT}, {32*t}, v{vTR}\nv_add_u32 v{vT}, {H0 if gi % 2 == 0 else H1}, v{vT}")
            for ch in range(4):
                for h2 in range(2):
                    for q1 in range(2):
                        A(f"ds_read_b64_tr_b16 {R(dst(mi, 8*hf+2*ch+h2, t)+2*q1, 2)}, v{vT} offset:{ch*16384 + h2*8192 + q1*1024}")
        A("s_waitcnt lgkmcnt(0)\ns_barrier")
        if gi + 2 < len(groups): dma(gi + 2)

def flag(A, vT, sVal, sAddr):
    A(f"v_mov_b32 v{vT}, s{sVal}\ns_mov_b64 exec, 1\nbuffer_store_dword v{vT}, off, {srd(WS)}, s{sAddr} sc1\ns_mov_b64 exec, -1")

def arole(A, opt):
    LB, XG, XR, QWr, QRd, G0, MW, MR, NINF, KMW = 0, 1, 2, 3, 4, 5, 6, 7, 8, 9
    T0, T1 = 10, 11
    ONES = 12
    ACC = 16
    XF = 64
    XB, QK0, MEMF, KMF = 0x0, 0x10000, 0x20000, 0x24000
    sH, sC_, sI, sXS, sXL, sKV, sPKV, sPO, sEX, sOH, sC, sNC, sLO, sHI, sCNT = 60, 61, 62, 63, 64, 65, 66, 67, 68, 69, 70, 71, 72, 77, 78
    sM0, sML = 86, 94
    def Wf(mi, kk, t): return 128 + 128*mi + 8*kk + 4*t
    A(f"""
    L_arole:
    s_sub_u32 s{sH}, s{sGRP}, 1
    s_lshl_b32 s{sH}, s{sH}, 3
    s_lshr_b32 s{sT0}, s{sIDX}, 2
    s_add_u32 s{sH}, s{sH}, s{sT0}
    s_and_b32 s{sC_}, s{sIDX}, 3
    """)
    lane_decode(A)
    A(f"""
    v_lshlrev_b32 v{XG}, 10, v20
    v_lshl_add_u32 v{XG}, v21, 4, v{XG}
    s_lshr_b32 s{sT0}, s{sW}, 1
    s_lshl_b32 s{sT0}, s{sT0}, 14
    s_and_b32 s{sT1}, s{sW}, 1
    s_lshl_b32 s{sT1}, s{sT1}, 9
    s_add_u32 s{sT0}, s{sT0}, s{sT1}
    v_add_u32 v{XG}, s{sT0}, v{XG}
    s_lshl_b32 s{sXS}, s{sC_}, 15
    s_lshl_b32 s{sXL}, s{sW}, 13
    """)
    x_dma(A, XG, sXS, sXL)
    A(f"s_lshl_b32 s{sT2}, s{sH}, 8")
    load_weights(A, [WK, WV, WQ], 8192, sT2, Wf, 8)
    A(f"""
    s_add_u32 s{sXS}, s{sXS}, {4*32768}
    s_xor_b32 s{sXL}, s{sXL}, 0x8000
    """)
    x_dma(A, XG, sXS, sXL)
    A(f"""
    s_add_u32 s{sXS}, s{sXS}, {4*32768}
    s_xor_b32 s{sXL}, s{sXL}, 0x8000
    ; masks
    v_lshlrev_b32 v24, 2, v21
    """)
    for i in range(4):
        A(f"v_add_u32 v25, {i}, v24\nv_cmp_le_u32 s[{sM0+2*i}:{sM0+2*i+1}], v25, v20")
    c = (128 ** -0.5) * 1.4426950408889634
    A(f"""
    s_mov_b32 s{sML}, -1
    s_mov_b32 s{sML+1}, 0
    s_mov_b32 s{sC}, {f2u(c):#x}
    s_mov_b32 s{sNC}, {f2u(-c):#x}
    s_mov_b32 s{sLO}, 0x05040100
    s_mov_b32 s{sHI}, 0x07060302
    v_and_b32 v24, 1, v20
    v_lshlrev_b32 v{MW}, 10, v24
    v_lshrrev_b32 v24, 1, v21
    v_lshl_add_u32 v{MW}, v24, 8, v{MW}
    v_lshrrev_b32 v24, 1, v20
    v_lshl_add_u32 v{MW}, v24, 4, v{MW}
    v_and_b32 v24, 1, v21
    v_lshl_add_u32 v{MW}, v24, 3, v{MW}
    s_lshl_b32 s{sT0}, s{sW}, 12
    s_add_u32 s{sT0}, s{sT0}, {MEMF}
    v_add_u32 v{MW}, s{sT0}, v{MW}
    v_lshlrev_b32 v{LB}, 4, v0
    v_add_u32 v{MR}, {MEMF}, v{LB}
    v_mov_b32 v{XR}, v{LB}
    s_lshl_b32 s{sT1}, s{sW}, 10
    s_add_u32 s{sT2}, s{sT1}, {QK0}
    v_add_u32 v{QWr}, s{sT2}, v{LB}
    v_add_u32 v{QRd}, {QK0}, v{LB}
    s_add_u32 s{sT2}, s{sT1}, {KMF}
    v_add_u32 v{KMW}, s{sT2}, v{LB}
    s_lshl_b32 s{sT1}, s{sW}, 11
    v_add_u32 v{G0}, s{sT1}, v{LB}
    v_mov_b32 v{NINF}, 0xff800000
    v_mov_b32 v{ONES}, 0x3f803f80
    v_mov_b32 v{ONES+1}, 0x3f803f80
    v_mov_b32 v{ONES+2}, 0x3f803f80
    v_mov_b32 v{ONES+3}, 0x3f803f80
    v_add_u32 v24, s{sT0}, v{LB}
    v_mov_b64 v[28:29], 0
    v_mov_b64 v[30:31], 0
    ds_write_b128 v24, v[28:31]
    ds_write_b128 v24, v[28:31] offset:1024
    ds_write_b128 v24, v[28:31] offset:2048
    ds_write_b128 v24, v[28:31] offset:3072
    ; scalars
    s_lshl_b32 s{sT0}, s{sC_}, 5
    s_add_u32 s{sT0}, s{sT0}, s{sH}          ; seg*32+h
    s_lshl_b32 s{sKV}, s{sT0}, 14
    s_add_u32 s{sKV}, s{sKV}, {WS_KV}
    s_lshl_b32 s{sPO}, s{sT0}, 2
    s_add_u32 s{sPO}, s{sPO}, {WS_PRG + PRG_O}
    s_lshl_b32 s{sPKV}, s{sH}, 4
    s_lshl_b32 s{sT0}, s{sC_}, 2
    s_add_u32 s{sPKV}, s{sPKV}, s{sT0}
    s_add_u32 s{sPKV}, s{sPKV}, {WS_PRG + PRG_KV}
    s_lshl_b32 s{sEX}, s{sC_}, 13
    s_add_u32 s{sEX}, s{sEX}, {WS_EX}
    s_mul_i32 s{sOH}, s{sC_}, {2*OH_TT}
    s_lshl_b32 s{sT0}, s{sH}, 12
    s_add_u32 s{sOH}, s{sOH}, s{sT0}
    s_lshl_b32 s{sT0}, s{sW}, 10
    s_add_u32 s{sOH}, s{sOH}, s{sT0}
    s_add_u32 s{sOH}, s{sOH}, {WS_OH}
    s_mov_b32 s{sI}, 0
    s_mov_b32 s{sCNT}, 0
    """)
    wait_init(A, "a", T0)
    KAc = lambda t, tt: ACC + 8*tt + 4*t
    QAc = lambda t, tt: ACC + 16 + 8*tt + 4*t
    VAc = lambda tt, t: ACC + 32 + 8*t + 4*tt
    A("L_a_proj:")
    A("s_waitcnt vmcnt(8)\ns_barrier")
    def xr(kk): return [f"ds_read_b128 v[{XF+8*(kk&1)+4*tt}:{XF+8*(kk&1)+4*tt+3}], v{XR} offset:{16384*tt+1024*kk}" for tt in range(2)]
    for x in xr(0): A(x)
    for kk in range(16):
        if kk < 15:
            for x in xr(kk+1): A(x)
        A(f"s_waitcnt lgkmcnt({2 if kk < 15 else 0})")
        c0 = "0" if kk == 0 else None
        for tt in range(2):
            X = XF + 8*(kk&1) + 4*tt
            for t in range(2):
                A(mf(KAc(t, tt), Wf(0, kk, t), X, c0)); A(mf(VAc(tt, t), X, Wf(1, kk, t), c0)); A(mf(QAc(t, tt), Wf(2, kk, t), X, c0))
    PK = 80
    A("s_barrier")
    for tt in range(2):
        for i in range(4): A(f"v_cvt_pk_bf16_f32 v{PK+4*tt+i}, v{KAc(0,tt)+i}, v{KAc(1,tt)+i}")
    for t in range(2):
        for i in range(4): A(f"v_cvt_pk_bf16_f32 v{PK+8+4*t+i}, v{VAc(0,t)+2*i}, v{VAc(0,t)+2*i+1}")
    A(f"s_lshl_b32 s{sT0}, s{sW}, 10\ns_add_u32 s{sT0}, s{sT0}, s{sKV}\ns_add_u32 s{sT1}, s{sT0}, 4096\ns_add_u32 s{sT2}, s{sKV}, 8192")
    A(f"buffer_store_dwordx4 v[{PK}:{PK+3}], v{LB}, {srd(WS)}, s{sT0} offen sc1")
    A(f"buffer_store_dwordx4 v[{PK+4}:{PK+7}], v{LB}, {srd(WS)}, s{sT1} offen sc1")
    A(f"buffer_store_dwordx4 v[{PK+8}:{PK+11}], v{G0}, {srd(WS)}, s{sT2} offen sc1")
    A(f"buffer_store_dwordx4 v[{PK+12}:{PK+15}], v{G0}, {srd(WS)}, s{sT2} offen offset:1024 sc1")
    x_dma(A, XG, sXS, sXL)
    for tt in range(2):
        for i in range(4): A(f"v_cvt_pk_bf16_f32 v{PK+16+4*tt+i}, v{QAc(0,tt)+i}, v{QAc(1,tt)+i}")
    for i, off in enumerate([0, 4096, 16384, 20480, 8192, 12288]):
        A(f"ds_write_b128 v{QWr}, v[{PK+4*i}:{PK+4*i+3}] offset:{off}")
    A(f"""
    s_add_u32 s{sXS}, s{sXS}, {4*32768}
    s_xor_b32 s{sXL}, s{sXL}, 0x8000
    v_xor_b32 v{XR}, 0x8000, v{XR}
    s_add_u32 s{sKV}, s{sKV}, {4*32*16384}
    s_add_u32 s{sCNT}, s{sCNT}, 1
    v_xor_b32 v{QWr}, 0x8000, v{QWr}
    s_waitcnt vmcnt(8) lgkmcnt(0)
    s_barrier
    """)
    flag(A, T0, sCNT, sPKV)
    A(f"s_cmp_eq_u32 s{sCNT}, 1\ns_cbranch_scc0 L_a_att")
    if not opt.get("no_ch_wait"):
        A(f"""
        s_mov_b32 s{sTMO}, {TMO}
        L_a_chw:
        buffer_load_dword v{T0}, off, {srd(DBG)}, 0 offset:{DBG_CH} sc1
        s_sub_u32 s{sTMO}, s{sTMO}, 1
        s_cmp_eq_u32 s{sTMO}, 0
        s_cbranch_scc1 L_fail
        s_waitcnt vmcnt(0)
        v_readfirstlane_b32 s{sT0}, v{T0}
        s_cmp_lt_u32 s{sT0}, 128
        s_cbranch_scc1 L_a_chw
        """)
    A("s_branch L_a_proj")
    A("L_a_att:")
    Q, K, S, MB, KMa, VMa, V = 16, 48, 80, 48, 64, 72, 112
    S00, S01, S11, SM0, SM1 = S, S+4, S+8, S+12, S+16
    for i in range(8): A(f"ds_read_b128 v[{Q+4*i}:{Q+4*i+3}], v{QRd} offset:{8192+1024*i}")
    for i in range(4): A(f"ds_read_b128 v[{K+4*i}:{K+4*i+3}], v{QRd} offset:{1024*i}")
    A("s_waitcnt lgkmcnt(0)")
    for i in range(4, 8): A(f"ds_read_b128 v[{K+4*i}:{K+4*i+3}], v{QRd} offset:{1024*i}")
    A(f"s_lshl_b32 s{sT0}, s{sW}, 10\nv_add_u32 v{T0}, s{sT0}, v{QRd}")
    for t in range(2): A(f"ds_read_b128 v[{V+4*t}:{V+4*t+3}], v{T0} offset:{16384+4096*t}")
    for j in range(4):
        c0 = "0" if j == 0 else None
        A(mf(S00, K+4*j, Q+4*j, c0)); A(mf(S01, K+4*j, Q+16+4*j, c0))
    A("s_waitcnt lgkmcnt(0)")
    for j in range(4): A(mf(S11, K+16+4*j, Q+16+4*j, "0" if j == 0 else None))
    EXB = 100
    A(f"""
    s_mov_b32 s{sTMO}, {TMO}
    L_a_poll:
    buffer_load_dwordx4 v[{EXB}:{EXB+3}], v{G0}, {srd(WS)}, s{sEX} offen sc1
    buffer_load_dwordx4 v[{EXB+4}:{EXB+7}], v{G0}, {srd(WS)}, s{sEX} offen offset:1024 sc1
    s_sub_u32 s{sTMO}, s{sTMO}, 1
    s_cmp_eq_u32 s{sTMO}, 0
    s_cbranch_scc1 L_fail
    s_waitcnt vmcnt(0)
    v_max3_u32 v{T0}, v{EXB}, v{EXB+1}, v{EXB+2}
    v_max3_u32 v{T1}, v{EXB+3}, v{EXB+4}, v{EXB+5}
    v_max3_u32 v{T0}, v{T0}, v{EXB+6}, v{EXB+7}
    v_max_u32 v{T0}, v{T0}, v{T1}
    v_cmp_eq_u32 vcc, -1, v{T0}
    s_cbranch_vccz L_a_got
    s_sleep {opt.get("asleep", 4)}
    s_branch L_a_poll
    L_a_got:
    """)
    for ld in range(2):
        b = EXB + 4*ld; d = 120
        A(f"""v_perm_b32 v{d}, v{b+1}, v{b}, s{sLO}
        v_perm_b32 v{d+1}, v{b+3}, v{b+2}, s{sLO}
        v_perm_b32 v{d+2}, v{b+1}, v{b}, s{sHI}
        v_perm_b32 v{d+3}, v{b+3}, v{b+2}, s{sHI}
        ds_write_b64 v{MW}, v[{d}:{d+1}] offset:{2048*ld}
        ds_write_b64 v{MW}, v[{d+2}:{d+3}] offset:{2048*ld+512}""".replace(f"v{d}", f"v{d}") )
        if ld == 0: A("s_waitcnt lgkmcnt(0)")
    A("s_waitcnt lgkmcnt(0)\ns_barrier")
    def mr(kk): return f"ds_read_b128 v[{MB+4*(kk&3)}:{MB+4*(kk&3)+3}], v{MR} offset:{1024*kk}"
    for kk in range(3): A(mr(kk))
    for kk in range(16):
        if kk + 3 < 16: A(mr(kk+3))
        A(f"s_waitcnt lgkmcnt({min(3, 15-kk)})")
        c0 = "0" if kk == 0 else None
        M = MB + 4*(kk&3)
        for t in range(2): A(mf(KMa+4*t, Wf(0, kk, t), M, c0))
        for t in range(2): A(mf(VMa+4*t, M, Wf(1, kk, t), c0))
    for i in range(4): A(f"v_cvt_pk_bf16_f32 v{EXB+i}, v{KMa+i}, v{KMa+4+i}")
    A(f"ds_write_b128 v{KMW}, v[{EXB}:{EXB+3}]")
    VMp = 104
    for t in range(2):
        for i in range(2): A(f"v_cvt_pk_bf16_f32 v{VMp+2*t+i}, v{VMa+4*t+2*i}, v{VMa+4*t+2*i+1}")
    for i in range(4):
        A(f"v_cndmask_b32 v{S00+i}, v{NINF}, v{S00+i}, s[{sM0+2*i}:{sM0+2*i+1}]")
        A(f"v_cndmask_b32 v{S11+i}, v{NINF}, v{S11+i}, s[{sM0+2*i}:{sM0+2*i+1}]")
    A("s_waitcnt lgkmcnt(0)\ns_barrier")
    for j in range(4): A(f"ds_read_b128 v[{MB+4*j}:{MB+4*j+3}], v{MR} offset:{KMF-MEMF+1024*j}")
    for j in range(4):
        A(f"s_waitcnt lgkmcnt({3-j})")
        c0 = "0" if j == 0 else None
        A(mf(SM0, MB+4*j, Q+4*j, c0)); A(mf(SM1, MB+4*j, Q+16+4*j, c0))
    M0_, M1_, U0, U1 = 108, 109, 110, 111
    A(f"v_max3_f32 v{M0_}, v{S00}, v{S00+1}, v{S00+2}\nv_max_f32 v{M0_}, v{M0_}, v{S00+3}")
    A(f"v_max3_f32 v{M1_}, v{S01}, v{S01+1}, v{S01+2}\nv_max3_f32 v{M1_}, v{M1_}, v{S01+3}, v{S11}")
    A(f"v_max3_f32 v{M1_}, v{M1_}, v{S11+1}, v{S11+2}\nv_max_f32 v{M1_}, v{M1_}, v{S11+3}")
    for i in range(8): A(f"v_cndmask_b32 v{SM0+i}, v{NINF}, v{SM0+i}, s[{sML}:{sML+1}]")
    for m, sm_ in ((M0_, SM0), (M1_, SM1)):
        A(f"v_max3_f32 v{m}, v{m}, v{sm_}, v{sm_+1}\nv_max3_f32 v{m}, v{m}, v{sm_+2}, v{sm_+3}")
    for sw in ("16", "32"):
        A(f"v_mov_b32 v{U0}, v{M0_}\nv_mov_b32 v{U1}, v{M1_}")
        A(f"v_permlane{sw}_swap_b32 v{M0_}, v{U0}\nv_permlane{sw}_swap_b32 v{M1_}, v{U1}")
        A(f"v_max_f32 v{M0_}, v{M0_}, v{U0}\nv_max_f32 v{M1_}, v{M1_}, v{U1}")
    A(f"v_mul_f32 v{M0_}, s{sNC}, v{M0_}\nv_mul_f32 v{M1_}, s{sNC}, v{M1_}")
    for b, m in ((S00, M0_), (S01, M1_), (S11, M1_), (SM0, M0_), (SM1, M1_)):
        for i in range(4): A(f"v_fma_f32 v{b+i}, v{b+i}, s{sC}, v{m}")
    for i in range(20): A(f"v_exp_f32 v{S+i}, v{S+i}")
    P = 16
    for d, b in ((16, S00), (20, S01), (22, S11), (24, SM0), (26, SM1)):
        A(f"v_cvt_pk_bf16_f32 v{d}, v{b}, v{b+1}\nv_cvt_pk_bf16_f32 v{d+1}, v{b+2}, v{b+3}")
    O, L = 32, 48
    A(mf16(L, ONES, 16, "0")); A(mf(L+4, ONES, 20, "0"))
    for t in range(2): A(mf16(O+4*t, V+4*t, 16, "0")); A(mf(O+8+4*t, V+4*t, 20, "0"))
    A(mf16(L, ONES, 24)); A(mf16(L+4, ONES, 26))
    for t in range(2): A(mf16(O+4*t, VMp+2*t, 24)); A(mf16(O+8+4*t, VMp+2*t, 26))
    A(f"v_rcp_f32 v{U0}, v{L}\nv_rcp_f32 v{U1}, v{L+4}")
    for tt in range(2):
        for i in range(8): A(f"v_mul_f32 v{O+8*tt+i}, v{O+8*tt+i}, v{U1 if tt else U0}")
        for i in range(4): A(f"v_cvt_pk_bf16_f32 v{56+4*tt+i}, v{O+8*tt+2*i}, v{O+8*tt+2*i+1}")
        if tt: A(f"s_add_u32 s{sT0}, s{sOH}, {OH_TT}")
        A(f"buffer_store_dwordx4 v[{56+4*tt}:{59+4*tt}], v{LB}, {srd(WS)}, s{sT0 if tt else sOH} offen sc1")
    A(f"""
    s_add_u32 s{sI}, s{sI}, 1
    s_add_u32 s{sEX}, s{sEX}, {4*8192}
    s_add_u32 s{sOH}, s{sOH}, {8*OH_TT}
    v_xor_b32 v{QRd}, 0x8000, v{QRd}
    s_waitcnt vmcnt(0)
    s_barrier
    """)
    flag(A, T0, sI, sPO)
    A(f"""
    s_cmp_lt_u32 s{sCNT}, 16
    s_cbranch_scc1 L_a_proj
    s_cmp_lt_u32 s{sI}, 16
    s_cbranch_scc1 L_a_att
    s_branch L_end
    """)

def frole(A, opt):
    LB, XG, XR, T0 = 0, 1, 2, 3
    ACC, XF = 16, 64
    sFG, sCF, sXS, sXL, sOH, sPH, sCNT, sNL = 60, 61, 63, 64, 69, 67, 78, 70
    def Wf(mi, kk, t): return 256 + 128*mi + 8*kk + 4*t
    A(f"""
    L_frole:
    s_cmp_ge_u32 s{sIDX}, 22
    s_cbranch_scc1 L_end
    s_cmp_ge_u32 s{sIDX}, 11
    s_cselect_b32 s{sFG}, 1, 0
    s_mul_i32 s{sT0}, s{sFG}, 11
    s_sub_u32 s{sCF}, s{sIDX}, s{sT0}
    """)
    lane_decode(A)
    A(f"""
    v_lshlrev_b32 v{XG}, 10, v20
    v_lshl_add_u32 v{XG}, v21, 4, v{XG}
    s_lshr_b32 s{sT0}, s{sW}, 1
    s_lshl_b32 s{sT0}, s{sT0}, 14
    s_and_b32 s{sT1}, s{sW}, 1
    s_lshl_b32 s{sT1}, s{sT1}, 9
    s_add_u32 s{sT0}, s{sT0}, s{sT1}
    v_add_u32 v{XG}, s{sT0}, v{XG}
    s_lshl_b32 s{sXS}, s{sFG}, 15
    s_lshl_b32 s{sXL}, s{sW}, 13
    """)
    x_dma(A, XG, sXS, sXL)
    A(f"s_lshl_b32 s{sT2}, s{sCF}, 8")
    load_weights(A, [WG, WU], 2752, sT2, Wf, 8)
    A(f"s_add_u32 s{sXS}, s{sXS}, {2*32768}\ns_xor_b32 s{sXL}, s{sXL}, 0x8000")
    x_dma(A, XG, sXS, sXL)
    A(f"""
    s_add_u32 s{sXS}, s{sXS}, {2*32768}
    s_xor_b32 s{sXL}, s{sXL}, 0x8000
    v_lshlrev_b32 v{LB}, 4, v0
    v_mov_b32 v{XR}, v{LB}
    s_mul_i32 s{sOH}, s{sFG}, {2*OH_TT}
    s_lshl_b32 s{sT0}, s{sCF}, 12
    s_add_u32 s{sOH}, s{sOH}, s{sT0}
    s_lshl_b32 s{sT0}, s{sW}, 10
    s_add_u32 s{sOH}, s{sOH}, s{sT0}
    s_add_u32 s{sOH}, s{sOH}, {WS_OH + 128*1024}
    s_lshl_b32 s{sPH}, s{sFG}, 6
    s_lshl_b32 s{sT0}, s{sCF}, 2
    s_add_u32 s{sPH}, s{sPH}, s{sT0}
    s_add_u32 s{sPH}, s{sPH}, {WS_PRG + PRG_H}
    s_mov_b32 s{sNL}, {f2u(-1.4426950408889634):#x}
    s_mov_b32 s{sCNT}, 0
    """)
    wait_init(A, "f", T0)
    GA = lambda t, tt: ACC + 8*tt + 4*t
    UA = lambda t, tt: ACC + 16 + 8*tt + 4*t
    A("L_f_loop:")
    A("s_waitcnt vmcnt(8)\ns_barrier")
    flag(A, T0, sCNT, sPH)
    def xr(kk): return [f"ds_read_b128 v[{XF+8*(kk&1)+4*tt}:{XF+8*(kk&1)+4*tt+3}], v{XR} offset:{16384*tt+1024*kk}" for tt in range(2)]
    for x in xr(0): A(x)
    for kk in range(16):
        if kk < 15:
            for x in xr(kk+1): A(x)
        A(f"s_waitcnt lgkmcnt({2 if kk < 15 else 0})")
        c0 = "0" if kk == 0 else None
        for tt in range(2):
            X = XF + 8*(kk&1) + 4*tt
            for t in range(2):
                A(mf(GA(t, tt), Wf(0, kk, t), X, c0)); A(mf(UA(t, tt), Wf(1, kk, t), X, c0))
    A("s_barrier")
    E = 80
    for i in range(16): A(f"v_mul_f32 v{E+i}, s{sNL}, v{ACC+i}")
    for i in range(16): A(f"v_exp_f32 v{E+i}, v{E+i}")
    for i in range(16): A(f"v_add_f32 v{E+i}, 1.0, v{E+i}")
    for i in range(16): A(f"v_rcp_f32 v{E+i}, v{E+i}")
    for i in range(16): A(f"v_mul_f32 v{ACC+i}, v{ACC+i}, v{ACC+16+i}")
    for i in range(16): A(f"v_mul_f32 v{ACC+i}, v{ACC+i}, v{E+i}")
    for tt in range(2):
        for i in range(4): A(f"v_cvt_pk_bf16_f32 v{96+4*tt+i}, v{ACC+8*tt+2*i}, v{ACC+8*tt+2*i+1}")
    A(f"s_add_u32 s{sT0}, s{sOH}, {OH_TT}")
    A(f"buffer_store_dwordx4 v[96:99], v{LB}, {srd(WS)}, s{sOH} offen sc1")
    A(f"buffer_store_dwordx4 v[100:103], v{LB}, {srd(WS)}, s{sT0} offen sc1")
    x_dma(A, XG, sXS, sXL)
    A(f"""
    s_add_u32 s{sXS}, s{sXS}, {2*32768}
    s_xor_b32 s{sXL}, s{sXL}, 0x8000
    v_xor_b32 v{XR}, 0x8000, v{XR}
    s_add_u32 s{sOH}, s{sOH}, {4*OH_TT}
    s_add_u32 s{sCNT}, s{sCNT}, 1
    s_cmp_lt_u32 s{sCNT}, 32
    s_cbranch_scc1 L_f_loop
    s_waitcnt vmcnt(0)
    s_barrier
    """)
    flag(A, T0, sCNT, sPH)
    A("s_branch L_end")

def orole(A, opt):
    LB, XG, PA, RW, RR, RL, OA, T0, T1, HL = 0, 1, 2, 3, 4, 5, 6, 7, 8, 9
    ACC = 12
    BUF, NB = 32, 28
    def Wo_(k, t): return 256 + 8*k + 4*t
    def Wd_(k, t): return 152 + 8*k + 4*t
    GWF = 240
    sOG, sCB, sSEG, sO, sHh, sXO, sOUT, sNL, sPAR, sSTG = 60, 61, 62, 63, 64, 65, 66, 70, 67, 68
    A(f"""
    L_orole:
    s_sub_u32 s{sOG}, s{sGRP}, 5
    s_lshl_b32 s{sOG}, s{sOG}, 1
    s_lshr_b32 s{sT0}, s{sIDX}, 4
    s_add_u32 s{sOG}, s{sOG}, s{sT0}
    s_and_b32 s{sCB}, s{sIDX}, 15
    """)
    lane_decode(A)
    A(f"""
    v_lshrrev_b32 v24, 2, v0
    v_lshlrev_b32 v26, 10, v24
    v_lshl_add_u32 v26, v22, 4, v26
    s_lshl_b32 s{sT0}, s{sCB}, 6
    v_add_u32 v26, s{sT0}, v26
    s_lshl_b32 s{sT0}, s{sW}, 20
    v_add_u32 v27, s{sT0}, v26
    s_mul_i32 s{sT0}, s{sW}, {352*1024}
    v_add_u32 v26, s{sT0}, v26
    v_lshl_add_u32 v28, v21, 2, v23
    v_lshlrev_b32 v28, 6, v28
    v_lshl_add_u32 v28, v22, 3, v28
    s_lshl_b32 s{sSTG}, s{sW}, 15
    v_add_u32 v28, s{sSTG}, v28
    v_lshlrev_b32 v24, 4, v21
    s_lshl_b32 s{sT0}, s{sW}, 8
    """)
    for k in range(4): A(f"buffer_load_dwordx4 v[{GWF+4*k}:{GWF+4*k+3}], v24, {srd(GW)}, s{sT0} offen offset:{64*k}")
    chunks = [(WD, 0, 8), (WD, 8, 3)] + [(WO, 8*i, 8) for i in range(4)]
    def dma(ci):
        mat, k0, nk = chunks[ci]
        for i in range(2*nk):
            A(f"s_add_u32 m0, s{sSTG}, {(ci & 1)*16384 + 1024*i}")
            A(f"s_mov_b32 s{sT0}, {(32*k0 + 16*i) * 1024}")
            A(f"buffer_load_dwordx4 v{27 if mat == WO else 26}, {srd(mat)}, s{sT0} offen lds")
    dma(0); dma(1)
    for ci, (mat, k0, nk) in enumerate(chunks):
        A(f"s_waitcnt vmcnt({2*chunks[ci+1][2] if ci + 1 < len(chunks) else 0})")
        for k in range(nk):
            for t in range(2):
                for q1 in range(2):
                    d = (Wo_ if mat == WO else Wd_)(k0 + k, t) + 2*q1
                    A(f"ds_read_b64_tr_b16 {R(d,2)}, v28 offset:{(ci&1)*16384 + 2048*k + 1024*q1 + 32*t}")
        A("s_waitcnt lgkmcnt(0)")
        if ci + 2 < len(chunks): dma(ci + 2)
    A(f"""
    s_barrier
    v_lshlrev_b32 v{XG}, 10, v20
    v_lshl_add_u32 v{XG}, v21, 4, v{XG}
    s_lshl_b32 s{sT0}, s{sW}, 8
    v_add_u32 v{XG}, s{sT0}, v{XG}
    v_lshlrev_b32 v{PA}, 2, v0
    s_lshl_b32 s{sT0}, s{sW}, 2
    v_add_u32 v24, s{sT0}, v21               ; token
    v_lshlrev_b32 v{RL}, 4, v24
    v_bfe_u32 v25, v20, 1, 2
    v_lshl_add_u32 v{RR}, v25, 8, v{RL}
    v_lshrrev_b32 v25, 3, v20
    v_lshl_add_u32 v{RR}, v25, 10, v{RR}
    v_and_b32 v25, 1, v20
    v_lshl_add_u32 v{RR}, v25, 3, v{RR}
    v_lshlrev_b32 v{OA}, 10, v24
    v_lshl_add_u32 v{OA}, v20, 2, v{OA}
    s_lshl_b32 s{sT0}, s{sCB}, 6
    v_add_u32 v{OA}, s{sT0}, v{OA}
    v_lshlrev_b32 v{LB}, 4, v0
    s_mul_i32 s{sT0}, s{sW}, 5120
    v_add_u32 v{RW}, s{sT0}, v{LB}
    s_cmp_eq_u32 s{sW}, 3
    s_cselect_b32 s{sT0}, 0x7f000000, 0
    v_add_u32 v{HL}, s{sT0}, v{LB}
    s_lshr_b32 s{sSEG}, s{sOG}, 1
    s_mul_i32 s{sO}, s{sOG}, {OH_TT}
    s_add_u32 s{sO}, s{sO}, {WS_OH}
    s_mul_i32 s{sT0}, s{sW}, {11*1024}
    s_add_u32 s{sHh}, s{sO}, s{sT0}
    s_add_u32 s{sHh}, s{sHh}, {128*1024}
    s_lshl_b32 s{sT0}, s{sW}, 15
    s_add_u32 s{sO}, s{sO}, s{sT0}
    s_lshl_b32 s{sXO}, s{sOG}, 14
    s_mov_b32 s{sNL}, {f2u(-1.4426950408889634):#x}
    """)
    wait_init(A, "o", T0)
    def poll(tag, base_expr_lines, nl, thr_lines):
        A(base_expr_lines)
        A(thr_lines)
        A(f"""
        s_mov_b32 s{sTMO}, {TMO}
        s_mov_b32 exec_lo, {(1 << nl) - 1:#x}
        s_mov_b32 exec_hi, 0
        L_o_{tag}:
        buffer_load_dword v{T0}, v{PA}, {srd(WS)}, s{sT2} offen sc1
        s_sub_u32 s{sTMO}, s{sTMO}, 1
        s_cmp_eq_u32 s{sTMO}, 0
        s_cbranch_scc1 L_fail
        s_waitcnt vmcnt(0)
        v_cmp_ge_u32 vcc, s{sT3}, v{T0}
        s_cbranch_vccz L_o_{tag}ok
        s_sleep {opt.get("osleep", 2)}
        s_branch L_o_{tag}
        L_o_{tag}ok:
        s_mov_b64 exec, -1
        """)
    A("L_o_task:")
    nowait = opt.get("no_oh_wait")
    if not nowait:
        poll("h", f"s_and_b32 s{sT2}, s{sSEG}, 1\ns_lshl_b32 s{sT2}, s{sT2}, 6\ns_add_u32 s{sT2}, s{sT2}, {WS_PRG + PRG_H}", 11, f"s_lshr_b32 s{sT3}, s{sSEG}, 1")
    B = lambda i: BUF + 4*(i % NB)
    for k in range(4): A(f"buffer_load_dwordx4 v[{B(k)}:{B(k)+3}], v{XG}, {srd(XS)}, s{sXO} offen offset:{64*k}")
    for k in range(11):
        if k % 4 == 0 and k: A(f"s_add_u32 s{sT0}, s{sHh}, {1024*k}")
        A(f"buffer_load_dwordx4 v[{B(4+k)}:{B(4+k)+3}], v{HL if k == 10 else LB}, {srd(WS)}, s{sHh if k < 4 else sT0} offen offset:{1024*(k%4)} sc1")
    for k in range(4):
        A(f"s_waitcnt vmcnt({14-k})")
        A(mf(ACC+16, GWF+4*k, B(k), "0" if k == 0 else None))
    for k in range(11):
        A(f"s_waitcnt vmcnt({10-k})")
        for t in range(2): A(mf(ACC+8+4*t, Wd_(k, t), B(4+k), "0" if k == 0 else None))
    if not nowait:
        poll("o", f"s_and_b32 s{sT2}, s{sSEG}, 3\ns_lshl_b32 s{sT2}, s{sT2}, 7\ns_add_u32 s{sT2}, s{sT2}, {WS_PRG + PRG_O}", 32, f"s_lshr_b32 s{sT3}, s{sSEG}, 2")
    def ol(k):
        if k % 4 == 0: A(f"s_add_u32 s{sT0}, s{sO}, {1024*k}")
        A(f"buffer_load_dwordx4 v[{B(k)}:{B(k)+3}], v{LB}, {srd(WS)}, s{sT0} offen offset:{1024*(k%4)} sc1")
    for k in range(NB): ol(k)
    for k in range(32):
        issued = min(32, NB + k)
        A(f"s_waitcnt vmcnt({issued - k - 1})")
        for t in range(2): A(mf(ACC+4*t, Wo_(k, t), B(k), "0" if k == 0 else None))
        if NB + k < 32: ol(NB + k)
    for i in range(5): A(f"ds_write_b128 v{RW}, v[{ACC+4*i}:{ACC+4*i+3}] offset:{1024*i}")
    A("s_waitcnt lgkmcnt(0)\ns_barrier")
    F = BUF
    for sw in range(4):
        A(f"ds_read_b64 v[{F+2*sw}:{F+2*sw+1}], v{RR} offset:{5120*sw}")
        A(f"ds_read_b64 v[{F+8+2*sw}:{F+9+2*sw}], v{RR} offset:{5120*sw+2048}")
        A(f"ds_read_b32 v{F+16+sw}, v{RL} offset:{5120*sw+4096}")
    A(f"""
    v_xor_b32 v{RW}, 0x8000, v{RW}
    v_xor_b32 v{RR}, 0x8000, v{RR}
    v_xor_b32 v{RL}, 0x8000, v{RL}
    s_waitcnt lgkmcnt(0)
    v_add_f32 v{F+16}, v{F+16}, v{F+17}
    v_add_f32 v{F+18}, v{F+18}, v{F+19}
    v_add_f32 v{F+16}, v{F+16}, v{F+18}
    v_mul_f32 v{F+16}, s{sNL}, v{F+16}
    v_exp_f32 v{F+16}, v{F+16}
    """)
    for b in (F, F+8):
        for i in range(2):
            A(f"v_add_f32 v{b+i}, v{b+i}, v{b+2+i}\nv_add_f32 v{b+4+i}, v{b+4+i}, v{b+6+i}\nv_add_f32 v{b+i}, v{b+i}, v{b+4+i}")
    A(f"""
    v_add_f32 v{F+16}, 1.0, v{F+16}
    v_rcp_f32 v{F+16}, v{F+16}
    v_sub_f32 v{F+17}, 1.0, v{F+16}
    v_mul_f32 v{F+8}, v{F+8}, v{F+17}
    v_mul_f32 v{F+9}, v{F+9}, v{F+17}
    v_fma_f32 v{F}, v{F}, v{F+16}, v{F+8}
    v_fma_f32 v{F+1}, v{F+1}, v{F+16}, v{F+9}
    v_cvt_pk_bf16_f32 v{F}, v{F}, v{F+1}
    buffer_store_dword v{F}, v{OA}, {srd(OUT)}, s{sXO} offen
    s_add_u32 s{sSEG}, s{sSEG}, 2
    s_add_u32 s{sO}, s{sO}, {4*OH_TT}
    s_add_u32 s{sHh}, s{sHh}, {4*OH_TT}
    s_add_u32 s{sXO}, s{sXO}, 65536
    s_cmp_lt_u32 s{sSEG}, 64
    s_cbranch_scc1 L_o_task
    s_branch L_end
    """)
```

```python
import sys, json
from common import *
import chain as CH
HEADER = open("gated_mix__memory_aug_recurrent_mem_tr__swiglu_ffn__prompt.s.ref").read().split("; Override launch")[0]
def gen(opt):
    A = Asm()
    A.raw(HEADER.rstrip())
    A.raw(f"; @launch kernel={KNAME} grid=(256,1,1) block=(256,1,1) lds=163840" if opt.get("list") else "; @launch grid=(256,1,1) block=(256,1,1) lds=163840")
    A.raw(f'.amdgcn_target "amdgcn-amd-amdhsa--gfx950"\n.text\n.globl {KNAME}\n.p2align 8\n.type {KNAME},@function')
    A.label(KNAME)
    prologue(A, opt)
    roles = opt.get("roles", "CAFO")
    A(f"s_cmp_eq_u32 s{sGRP}, 0\ns_cbranch_scc1 {'L_chain' if 'C' in roles else 'L_end'}")
    A(f"s_cmp_le_u32 s{sGRP}, 4\ns_cbranch_scc1 {'L_arole' if 'A' in roles else 'L_end'}")
    A(f"s_cmp_le_u32 s{sGRP}, 6\ns_cbranch_scc1 {'L_orole' if 'O' in roles else 'L_end'}")
    A(f"s_branch {'L_frole' if 'F' in roles else 'L_end'}")
    overflow(A, opt)
    epilogue(A)
    if 'C' in roles: CH.chain(A, opt)
    if 'A' in roles or 'F' in roles or 'O' in roles:
        import workers as WK_
        if 'A' in roles: WK_.arole(A, opt)
        if 'F' in roles: WK_.frole(A, opt)
        if 'O' in roles: WK_.orole(A, opt)
    A.raw(kernel_desc(KNAME, 512, 102, 256))
    return A.finalize(verbose=opt.get("verbose", False))
if __name__ == "__main__":
    opt = json.loads(sys.argv[2]) if len(sys.argv) > 2 else {}
    open(sys.argv[1], "w").write(gen(opt))
```

```python
from common import *
L_KV, L_MEM, L_QB, L_OB, L_SEL, L_H0, L_H1 = 0x0, 0x8000, 0xA000, 0xB200, 0xBA00, 0x8000, 0x18000
L_WO, L_WQ = 0xC000, 0x18000
LB, IDX, SCAT, MST, QW, QR, KR, OW, TRQ, TRO, G0, MA1, MA2, MA3, VM, VM1 = range(16)
MEM = 16
QA, KA, VA, SM = 48, 56, 64, 72
TA, TB, PG, KXA = 76, 77, 78, 79
T0, T1 = TA, TB
BIG = 80
SX, OX, KX = 48, 56, BIG
QO, VX = MEM + 8, MEM + 24
KOr = [56, 60, MEM, MEM + 4]
ON, PMA, PMB = 64, 68, 70
LX, PX, ZZ = MEM, MEM + 8, 48
NEG, OO = 52, 64
WOS = [80, 88, 96, 104, 48, 56]
def WQ_res(p, t): return 112 + 8 * (2 * p + t)
def WQ_stg(p, t): return BIG + 16 * (p & 1) + 8 * t
def WO_res(tau, k2): return 176 + 8 * (2 * tau + k2)
def WKf(ks, t): return 256 + 8 * (2 * ks + t)
def WVf(ks, t): return 384 + 8 * (2 * ks + t)
sH, sS, sMc, sMn, sMr, sPc, sPr, sKV, sEX, sC, sNC, sPRGKV, sPRGKM, sT0, sT1, sW1K, sW2K, sOM = 60, 61, 62, 63, 64, 65, 66, 67, 68, 69, 70, 71, 72, 73, 74, 75, 76, 78
sP1, sVV, sKXD, sVXD, sP2, sPGA, sKVT, sPGO, sH13, sP3 = 80, 81, 82, 83, 77, 84, 78, 72, 75, 88
QOFF = [0, 256, 2048, 2304]
QOFW = [0, 512, 8192, 8704]
sCC = 90

def sm(acc, a, b): return f"v_smfmac_f32_16x16x64_bf16 {R(acc,4)}, {R(a,4)}, {R(b,8)}, v{IDX}"
def mf(acc, a, b, c=None): return f"v_mfma_f32_16x16x32_bf16 {R(acc,4)}, {R(a,4)}, {R(b,4)}, {R(acc,4) if c is None else c}"
def mf16(acc, a, b): return f"v_mfma_f32_16x16x16_bf16 {R(acc,4)}, {R(a,2)}, {R(b,2)}, {R(acc,4)}"
def q_(ks, t): return sm(QA + 4*t, MEM + 4*ks, WQ_res(ks >> 1, t) if ks % 2 == 0 else WQ_stg(ks >> 1, t))
def k_(ks, t): return sm(KA + 4*t, MEM + 4*ks, WKf(ks, t))
def v_(ks, t): return sm(VA + 4*t, MEM + 4*ks, WVf(ks, t))

def trq_reads(dst, base_imm, treg, add10000=False):
    out = []
    for p in range(4):
        if p == 0: out.append(f"v_mov_b32 v{treg}, v{TRQ}")
        else:
            out.append(f"v_add_u32 v{treg}, {p*16384}, v{TRQ}")
            out.append(f"v_and_b32 v{treg}, 0xffff, v{treg}")
        if add10000: out.append(f"v_add_u32 v{treg}, 0x10000, v{treg}")
        for t in range(2):
            if t: out.append(f"v_xor_b32 v{treg}, 32, v{treg}")
            for qd in range(4):
                out.append(f"ds_read_b64_tr_b16 {R(dst(p,t)+2*qd,2)}, v{treg} offset:{base_imm+QOFW[qd]}")
    return out
def tro_reads(dst, tps, treg):
    out = []
    for tp in tps:
        out.append(f"v_xor_b32 v{treg}, {32*tp}, v{TRO}")
        for k2 in range(2):
            for qd in range(4):
                out.append(f"ds_read_b64_tr_b16 {R(dst(tp,k2)+2*qd,2)}, v{treg} offset:{32768*k2+QOFF[qd]}")
    return out

def chain_init(A, opt):
    A(f"""
    L_chain:
    s_mov_b32 s{sH}, s{sIDX}
    v_and_b32 v20, 15, v0               ; n
    v_lshrrev_b32 v21, 4, v0            ; g
    v_and_b32 v22, 3, v0                ; n&3 (cc / c)
    v_bfe_u32 v23, v0, 2, 2             ; n>>2 (u / a)
    s_lshl_b32 s{sH13}, s{sH}, 13
    s_lshl_b32 s{sW2K}, s{sW}, 11
    v_lshrrev_b32 v24, 5, v0
    v_lshlrev_b32 v24, 3, v24
    s_lshl_b32 s{sT0}, s{sW}, 1
    v_add_u32 v24, s{sT0}, v24
    v_xor_b32 v24, v24, v20             ; c16
    s_lshl_b32 s{sT0}, s{sW}, 4
    v_add_u32 v25, s{sT0}, v21          ; row 16w + (l>>4)
    v_lshlrev_b32 v27, 10, v25
    v_lshrrev_b32 v28, 3, v24
    v_lshl_add_u32 v27, v28, 8, v27
    v_and_b32 v28, 7, v24
    v_lshl_add_u32 v27, v28, 4, v27
    s_lshl_b32 s{sT0}, s{sH}, 17
    v_add_u32 v27, s{sT0}, v27
    s_and_b32 s{sC}, s{sW}, 1
    s_lshr_b32 s{sT0}, s{sW}, 1
    s_lshl_b32 s{sT0}, s{sT0}, 7
    s_lshl_b32 s{sT1}, s{sC}, 4
    s_add_u32 s{sT0}, s{sT0}, s{sT1}
    v_add_u32 v25, s{sT0}, v21
    v_and_b32 v24, 1, v21
    v_lshlrev_b32 v24, 1, v24
    s_lshl_b32 s{sT1}, s{sC}, 2
    v_add_u32 v24, s{sT1}, v24
    v_xor_b32 v24, v24, v20
    v_lshlrev_b32 v26, 13, v25
    v_lshl_add_u32 v26, v24, 4, v26
    s_lshl_b32 s{sT0}, s{sH}, 8
    v_add_u32 v26, s{sT0}, v26          ; v26: i even
    v_xor_b32 v34, 128, v26             ; v34: i odd
    s_lshl_b32 s{sT1}, s{sW}, 12
    v_lshrrev_b32 v28, 1, v21
    s_lshl_b32 s{sT0}, s{sW}, 1
    v_add_u32 v28, s{sT0}, v28
    v_lshlrev_b32 v28, 10, v28
    v_and_b32 v29, 1, v21
    v_lshl_add_u32 v28, v29, 1, v28
    v_lshl_add_u32 v28, v22, 2, v28
    s_bfe_u32 s{sT0}, s{sH}, 0x10002
    s_lshl_b32 s{sT0}, s{sT0}, 9
    s_lshr_b32 s{sC}, s{sH}, 3
    s_lshl_b32 s{sC}, s{sC}, 6
    s_add_u32 s{sT0}, s{sT0}, s{sC}
    s_bfe_u32 s{sC}, s{sH}, 0x10001
    s_lshl_b32 s{sC}, s{sC}, 8
    s_add_u32 s{sT0}, s{sT0}, s{sC}
    s_and_b32 s{sC}, s{sH}, 1
    s_lshl_b32 s{sC}, s{sC}, 4
    s_add_u32 s{sT0}, s{sT0}, s{sC}
    buffer_load_ushort v30, v28, {srd(M0S)}, s{sT0} offen
    buffer_load_ushort v31, v28, {srd(M0S)}, s{sT0} offen offset:32
    """)
    groups = [(WK, 0), (WK, 1), (WV, 0), (WV, 1), (WO, 0), (WQ, 0), (WO, 1), (WQ, 1)]
    def dma(gi):
        mat, par = groups[gi]
        hb = L_H0 if gi % 2 == 0 else L_H1
        for sl in range(4):
            for i in range(4):
                so = (256*par + 32*sl + 4*i) * 8192 if mat != WO else (sl >> 1) * 65536 + i * 4096 + 512 * (sl & 1) + 128 * par
                A(f"s_add_u32 m0, s{sT1}, {hb + sl*16384 + i*1024}")
                A(f"s_mov_b32 s{sT0}, {so}")
                A(f"buffer_load_dwordx4 v{27 if mat == WO else 34 if i & 1 else 26}, {srd(mat)}, s{sT0} offen lds")
    dma(0)
    A(f"""
    v_and_b32 v28, 1, v0
    v_mov_b32 v{IDX}, 0x4444
    v_mov_b32 v29, 0xeeee
    v_cmp_eq_u32 vcc, 1, v28
    v_cndmask_b32 v{IDX}, v{IDX}, v29, vcc
    ; SCAT = (2w + b)*8192 + g*2048 + h*64 + (n&7)*8
    v_lshrrev_b32 v28, 3, v20
    v_lshlrev_b32 v{SCAT}, 13, v28
    v_lshl_add_u32 v{SCAT}, v21, 11, v{SCAT}
    v_and_b32 v28, 7, v20
    v_lshl_add_u32 v{SCAT}, v28, 3, v{SCAT}
    s_lshl_b32 s{sT0}, s{sW}, 14
    s_lshl_b32 s{sC}, s{sH}, 6
    s_add_u32 s{sT0}, s{sT0}, s{sC}
    v_add_u32 v{SCAT}, s{sT0}, v{SCAT}
    v_lshlrev_b32 v{MST}, 4, v21
    v_lshl_add_u32 v{MST}, v22, 2, v{MST}
    s_lshl_b32 s{sT0}, s{sH}, 8
    s_lshl_b32 s{sC}, s{sW}, 6
    s_add_u32 s{sT0}, s{sT0}, s{sC}
    v_add_u32 v{MST}, s{sT0}, v{MST}
    v_mov_b32 v29, 0x7fffff00
    v_cmp_le_u32 vcc, 12, v20
    v_cndmask_b32 v{MST}, v29, v{MST}, vcc
    v_and_b32 v28, 1, v23
    v_lshlrev_b32 v28, 6, v28
    v_lshlrev_b32 v29, 5, v21
    v_xor_b32 v28, v28, v29
    v_lshl_add_u32 v{QW}, v23, 7, v28
    v_lshl_add_u32 v{QW}, v22, 2, v{QW}
    s_lshl_b32 s{sT0}, s{sW}, 10
    s_add_u32 s{sT0}, s{sT0}, {L_QB}
    v_add_u32 v{QW}, s{sT0}, v{QW}
    v_and_b32 v28, 1, v21
    v_lshlrev_b32 v28, 2, v28
    v_and_b32 v29, 7, v20
    v_xor_b32 v29, v29, v28
    v_lshlrev_b32 v29, 4, v29
    v_lshl_add_u32 v{QR}, v21, 7, v29
    v_add_u32 v{QR}, {L_QB}, v{QR}
    v_lshl_add_u32 v29, v23, 1, v22
    v_and_b32 v29, 7, v29
    v_xor_b32 v29, v29, v28
    v_lshlrev_b32 v29, 4, v29
    v_lshl_add_u32 v{KR}, v21, 7, v29
    v_add_u32 v{KR}, {L_QB+512}, v{KR}
    v_lshlrev_b32 v{OW}, 8, v21
    v_and_b32 v29, 7, v20
    v_lshl_add_u32 v{OW}, v29, 5, v{OW}
    s_lshr_b32 s{sT0}, s{sW}, 1
    s_lshl_b32 s{sT0}, s{sT0}, 10
    s_and_b32 s{sC}, s{sW}, 1
    s_lshl_b32 s{sC}, s{sC}, 4
    s_add_u32 s{sT0}, s{sT0}, s{sC}
    s_add_u32 s{sT0}, s{sT0}, {L_OB}
    v_add_u32 v{OW}, s{sT0}, v{OW}
    v_lshlrev_b32 v28, 12, v23
    v_lshl_add_u32 v28, v21, 9, v28
    v_and_b32 v29, 1, v22
    v_lshl_add_u32 v28, v29, 3, v28
    v_and_b32 v29, 1, v21
    v_lshlrev_b32 v29, 3, v29
    v_lshl_add_u32 v29, v23, 1, v29     ; f2
    v_lshrrev_b32 v32, 1, v22           ; cc>>1
    s_and_b32 s{sT0}, s{sW}, 1
    s_lshl_b32 s{sT0}, s{sT0}, 3
    v_add_u32 v33, s{sT0}, v32
    v_xor_b32 v33, v33, v29
    v_lshl_add_u32 v{TRO}, v33, 4, v28
    s_lshr_b32 s{sT0}, s{sW}, 1
    s_lshl_b32 s{sT0}, s{sT0}, 14
    s_add_u32 s{sT0}, s{sT0}, {L_H0}
    v_add_u32 v{TRO}, s{sT0}, v{TRO}
    v_and_b32 v28, 1, v23
    v_lshrrev_b32 v29, 1, v23
    v_lshl_add_u32 v33, v28, 4, v29
    v_lshl_add_u32 v33, v21, 2, v33
    v_lshlrev_b32 v33, 8, v33
    v_lshl_add_u32 v29, v28, 1, v29
    v_and_b32 v28, 1, v21
    v_lshl_add_u32 v29, v28, 2, v29
    v_lshlrev_b32 v29, 1, v29
    s_lshl_b32 s{sT0}, s{sW}, 2
    v_add_u32 v28, s{sT0}, v32
    v_xor_b32 v28, v28, v29
    v_lshl_add_u32 v33, v28, 4, v33
    v_and_b32 v28, 1, v22
    v_lshl_add_u32 v{TRQ}, v28, 3, v33
    s_lshl_b32 s{sT0}, s{sW}, 14
    v_add_u32 v{TRQ}, s{sT0}, v{TRQ}
    v_mov_b32 v28, 0x3f80
    v_mov_b32 v29, 0x3f800000
    v_cmp_le_u32 vcc, 8, v20
    v_cndmask_b32 v28, v28, v29, vcc
    v_and_b32 v29, 7, v20
    v_mov_b32 v33, 0
    """)
    for r, val in enumerate([0, 1, 4, 5]):
        A(f"v_cmp_eq_u32 vcc, {val}, v29\nv_cndmask_b32 v{36+r}, v33, v28, vcc")
    A(f"""
    v_lshlrev_b32 v{LB}, 4, v0
    v_add_u32 v{G0}, s{sW2K}, v{LB}
    """)
    for p, r in ((1, MA1), (2, MA2), (3, MA3)):
        A(f"v_add_u32 v{r}, {2048*p}, v{G0}\nv_and_b32 v{r}, 0x1fff, v{r}")
    dma(1)
    A("v_mov_b32 v40, -1\nv_mov_b32 v41, -1\nv_mov_b32 v42, -1\nv_mov_b32 v43, -1")
    A(f"s_lshl_b32 s{sC}, s{sH}, 13")
    for sl in range(4):
        A(f"s_add_u32 s{sT0}, s{sC}, {WS_P + sl*0x40000}")
        A(f"buffer_store_dwordx4 v[40:43], v{G0}, {srd(WS)}, s{sT0} offen sc1")
        A(f"buffer_store_dwordx4 v[40:43], v{G0}, {srd(WS)}, s{sT0} offen offset:1024 sc1")
    for sl in range(1, 4):
        A(f"s_mov_b32 s{sT0}, {WS_M + sl*8192}")
        A(f"buffer_store_dword v40, v{MST}, {srd(WS)}, s{sT0} offen sc1")
    A(f"s_lshl_b32 s{sC}, s{sH}, 14")
    for sl in range(2):
        A(f"s_add_u32 s{sT0}, s{sC}, {WS_EX + sl*8192}")
        A(f"buffer_store_dwordx4 v[40:43], v{G0}, {srd(WS)}, s{sT0} offen sc1")
        A(f"buffer_store_dwordx4 v[40:43], v{G0}, {srd(WS)}, s{sT0} offen offset:1024 sc1")
    A(f"""
    s_waitcnt vmcnt(47)
    v_lshl_or_b32 v{VM}, v31, 16, v30
    v_min_u32 v{VM}, -2, v{VM}
    s_mov_b32 s{sT0}, {WS_M}
    buffer_store_dword v{VM}, v{MST}, {srd(WS)}, s{sT0} offen sc1
    """)
    dsts = [lambda p, t: WKf(2*p, t), lambda p, t: WKf(2*p+1, t), lambda p, t: WVf(2*p, t), lambda p, t: WVf(2*p+1, t), None, WQ_res]
    for gi in range(6):
        n = {0: 32, 1: 16, 2: 17, 4: 17}.get(gi, 16)
        A(f"s_waitcnt vmcnt({n})")
        if gi == 1:
            A(f"v_mov_b32 v30, 1\ns_mov_b64 exec, 1\nbuffer_atomic_add v30, off, {srd(DBG)}, 0 offset:{DBG_CH}\ns_mov_b64 exec, -1")
        A("s_barrier")
        if gi != 4: rd = trq_reads(dsts[gi], L_H0, T0, add10000=(gi % 2 == 1))
        else: rd = tro_reads(WO_res, range(4), T0)
        for r in rd: A(r)
        A("s_waitcnt lgkmcnt(0)\ns_barrier")
        if gi == 3: A(f"buffer_load_dword v35, off, {srd(DBG)}, 0 offset:{DBG_INIT} sc1")
        if gi == 5:
            A(f"v_readfirstlane_b32 s85, v35\ns_cmp_lg_u32 s85, 0\ns_cbranch_scc1 L_c_iok")
            wait_init(A, "c", 35)
            A(f"""
            L_c_iok:
            s_lshl_b32 s{sPRGKV}, s{sH}, 7
            s_add_u32 s{sPRGKV}, s{sPRGKV}, {WS_PRG + PRG_KV}
            v_lshrrev_b32 v33, 2, v{LB}
            buffer_load_dword v35, v33, {srd(DBG)}, 0 offen sc1
            buffer_load_dwordx4 v[20:23], off, {srd(WS)}, s{sPRGKV} sc1
            """)
        dma(gi + 2)
    import struct
    c = (128 ** -0.5) * 1.4426950408889634
    cb = struct.unpack("<I", struct.pack("<f", c))[0]
    A(f"""
    s_mov_b32 s{sC}, {cb:#x}
    s_mov_b32 s{sNC}, {cb | 0x80000000:#x}
    s_mov_b32 s{sCC}, {cb:#x}
    s_mov_b32 s{sCC+1}, {cb:#x}
    s_mov_b32 s{sS}, 0
    s_lshl_b32 s{sKV}, s{sH}, 14
    s_add_u32 s{sKV}, s{sKV}, {WS_KV}
    s_mov_b32 s{sEX}, {WS_EX}
    s_add_u32 s{sKXD}, s{sW2K}, {L_KV}
    s_add_u32 s{sVXD}, s{sW2K}, {L_KV + 8192}
    """)
    A("s_waitcnt vmcnt(16)\ns_barrier")
    TMP = [48, 56, 64, 80, 88, 96, 104, 40]
    for r in tro_reads(lambda tp, k2: WO_res(4, k2) if tp == 0 else TMP[2*(tp-1)+k2], range(4), T0): A(r)
    A(f"s_mul_i32 s{sT0}, s{sW}, 12288\ns_add_u32 s{sT0}, s{sT0}, {L_WO}")
    A("s_waitcnt lgkmcnt(0)\ns_barrier")
    A(f"v_add_u32 v{TRO}, s{sT0}, v{LB}")
    for i in range(12): A(f"ds_write_b128 v{TRO}, v[{TMP[i>>1]+4*(i&1)}:{TMP[i>>1]+4*(i&1)+3}] offset:{1024*i}")
    A(f"ds_write_b128 v{LB}, v[36:39] offset:{L_SEL}")
    A("s_waitcnt lgkmcnt(0)")
    tl(A, opt, 2, T0)
    kvw = not opt.get("no_kv_wait")
    A(f"""
    s_mov_b32 s{sTMO}, {TMO}
    s_branch L_c_chk
    L_c_wait:
    buffer_load_dword v35, v33, {srd(DBG)}, 0 offen sc1
    buffer_load_dwordx4 v[20:23], off, {srd(WS)}, s{sPRGKV} sc1
    s_sub_u32 s{sTMO}, s{sTMO}, 1
    s_cmp_eq_u32 s{sTMO}, 0
    s_cbranch_scc1 L_fail
    s_waitcnt vmcnt(0)
    L_c_chk:
    v_readlane_b32 s{sT0}, v35, {DBG_CH//4}
    v_readlane_b32 s{sT1}, v35, 0
    s_cmp_lt_u32 s{sT0}, 128
    s_cbranch_scc1 L_c_wait
    """)
    if kvw:
        A(f"""
        v_min_u32 v20, v20, v21
        v_min_u32 v20, v20, v22
        v_readfirstlane_b32 s{sT0}, v20
        s_cmp_eq_u32 s{sT0}, 0
        s_cbranch_scc1 L_c_wait
        """)
    tl(A, opt, 3, T0)
    A(f"s_add_u32 s{sVV}, s{sKV}, 8192")
    for x in kv_dma(True, True): A(x)
    A("s_waitcnt vmcnt(4)\ns_barrier")
    for r in trq_reads(lambda p, t: TMP[2*p+t], L_H0, T0, add10000=True): A(r)
    A(f"s_lshl_b32 s{sT0}, s{sW}, 14\ns_add_u32 s{sT0}, s{sT0}, {L_WQ}")
    A("s_waitcnt lgkmcnt(0)\ns_barrier")
    A(f"v_add_u32 v{TRQ}, s{sT0}, v{LB}")
    for i in range(16): A(f"ds_write_b128 v{TRQ}, v[{TMP[i>>1]+4*(i&1)}:{TMP[i>>1]+4*(i&1)+3}] offset:{1024*i}")
    A("s_waitcnt lgkmcnt(0)")
    tl(A, opt, 4, T0)
    if opt.get("trace"):
        A(f"""
        s_memrealtime s[12:13]
        s_waitcnt lgkmcnt(0)
        s_add_u32 s14, s12, 1200
        s_and_b32 s14, s14, 0xfffffc00
        s_mov_b32 s{sTMO}, 100000
        L_cal:
        s_memrealtime s[12:13]
        s_memtime s[16:17]
        s_waitcnt lgkmcnt(0)
        s_sub_u32 s{sTMO}, s{sTMO}, 1
        s_cmp_eq_u32 s{sTMO}, 0
        s_cbranch_scc1 L_caldone
        s_sub_u32 s15, s12, s14
        s_cmp_lt_i32 s15, 0
        s_cbranch_scc1 L_cal
        L_caldone:
        v_mov_b32 v{T0}, s12
        v_mov_b32 v{T1}, s16
        s_lshl_b32 s12, s{sH}, 5
        s_lshl_b32 s13, s{sW}, 3
        s_add_u32 s12, s12, s13
        s_add_u32 s12, s12, {WS_TRC + 3*MB}
        buffer_store_dwordx2 v[{T0}:{T1}], off, {srd(WS)}, s12
        """)
    for r in wq_stage([0, 1]): A(r)
    A(f"""
    v_mov_b32 v{KXA}, v{LB}
    s_mov_b32 s{sMc}, {WS_M}
    s_mov_b32 s{sMn}, {WS_M + 8192}
    s_mov_b32 s{sMr}, {WS_M + 3*8192}
    s_mov_b32 s{sPc}, {WS_P}
    s_mov_b32 s{sP1}, {WS_P + 0x10000}
    s_mov_b32 s{sP2}, {WS_P + 0x20000}
    s_mov_b32 s{sP3}, {WS_P + 0x30000}
    s_add_u32 s{sPr}, s{sH13}, {WS_P + 3*0x40000}
    s_add_u32 s{sKV}, s{sKV}, {32*16384}
    s_add_u32 s{sVV}, s{sKV}, 8192
    s_xor_b32 s{sKXD}, s{sKXD}, 0x4000
    s_xor_b32 s{sVXD}, s{sVXD}, 0x4000
    s_add_u32 s{sPGA}, s{sPRGKV}, 12
    s_waitcnt lgkmcnt(0)
    s_cmp_lt_u32 s{sT1}, 32
    s_cbranch_scc1 L_step_slow
    """)

def wq_stage(ps):
    return [f"ds_read_b128 {R(WQ_stg(p,t)+4*hf,4)}, v{TRQ} offset:{1024*(4*p+2*t+hf)}" for p in ps for t in range(2) for hf in range(2)]
def wo_stage(idx):
    return [f"ds_read_b128 {R(WOS[i]+4*hf,4)}, v{TRO} offset:{1024*(2*i+hf)}" for i in idx for hf in range(2)]
def zero_accs():
    return [f"v_mov_b64 v[{r}:{r+1}], 0" for r in range(QA, QA+24, 2)]
def sched(A, mf_list, gaps):
    for x in gaps.get(-1, []): A(x)
    for i, m in enumerate(mf_list):
        A(m)
        for x in gaps.get(i, []): A(x)
    assert max(gaps) < len(mf_list)
class LdsTrack:
    def __init__(self, A, verbose=False): self.A, self.q, self.v = A, [], verbose
    def emit(self, x):
        if isinstance(x, tuple): tag, x = x
        else: tag = None
        if not x: return
        if x.startswith("ds_"): self.q.append(tag)
        if x.startswith("s_waitcnt") and "lgkmcnt(0)" in x: self.q = []
        self.A(x)
    def need(self, tags):
        idx = [i for i, t in enumerate(self.q) if t in tags]
        if not idx: return None
        n = len(self.q) - 1 - max(idx)
        self.q = self.q[max(idx)+1:]
        return f"s_waitcnt lgkmcnt({n})"
    def wait(self, tags):
        w = self.need(tags)
        if w: self.A(w)
def gap_cost(m, items):
    slot = 0; smf = "smfmac" in m; prev_valu = False
    for x in items:
        if isinstance(x, tuple): x = x[1]
        if not x: continue
        if x.startswith("s_nop"): slot += int(x.split()[1]) + 1; prev_valu = False; continue
        slot += 1
        if x.startswith(("ds_", "buffer_")):
            slot = max(slot, 2) + (2 if prev_valu else 0); prev_valu = False
            if "store_dwordx4" in x or "write_b128" in x: slot += 3
            if "store_dwordx2" in x: slot += 1
        elif x.startswith("v_"):
            slot = max(slot, 3 if smf else 2) + (1 if x.startswith(("v_exp", "v_rcp")) else 0); prev_valu = True
        else: prev_valu = False
    return max(0, slot - 3) * 4
def sched2(T, mfs, gaps, name=""):
    assert max(gaps) < len(mfs)
    T.wait(mfs[0][1])
    over = []
    for i, (m, _) in enumerate(mfs):
        T.A(m)
        items = list(gaps.get(i, []))
        nxt = mfs[i+1][1] if i + 1 < len(mfs) else []
        late = [x[0] for x in items if isinstance(x, tuple) and x[0] in nxt]
        assert not late, (i, late)
        w = T.need(nxt)
        if w and not any(isinstance(x, str) and "lgkmcnt(0)" in x for x in items): items = [w] + items
        c = gap_cost(m, items)
        if c: over.append((i, c))
        for x in items: T.emit(x)
    if T.v: print("overflow", name, over, sum(c for _, c in over))
def spread(gaps, start, items, per=1, step=1, front=False):
    items = list(items); i = start
    while items:
        chunk, items = items[:per], items[per:]
        gaps[i] = (chunk + gaps.get(i, [])) if front else (gaps.get(i, []) + chunk)
        i += step
    return i

def kv_dma(k, v):
    out = []
    if k:
        out += [f"s_mov_b32 m0, s{sKXD}", f"buffer_load_dwordx4 v{G0}, {srd(WS)}, s{sKV} offen sc1 lds",
                f"buffer_load_dwordx4 v{G0}, {srd(WS)}, s{sKV} offen offset:1024 sc1 lds"]
    if v:
        out += [f"s_mov_b32 m0, s{sVXD}", f"buffer_load_dwordx4 v{G0}, {srd(WS)}, s{sVV} offen sc1 lds",
                f"buffer_load_dwordx4 v{G0}, {srd(WS)}, s{sVV} offen offset:1024 sc1 lds"]
    return out

def ld2(b, so):
    return [f"buffer_load_dwordx4 v[{b}:{b+3}], v{G0}, {srd(WS)}, s{so} offen sc1",
            f"buffer_load_dwordx4 v[{b+4}:{b+7}], v{G0}, {srd(WS)}, s{so} offen offset:1024 sc1"]
def chk8(b, t0, t1):
    return [f"v_max3_u32 v{t0}, v{b}, v{b+1}, v{b+2}", f"v_max3_u32 v{t1}, v{b+3}, v{b+4}, v{b+5}",
            f"v_max3_u32 v{t0}, v{t0}, v{b+6}, v{b+7}", f"v_max_u32 v{t0}, v{t0}, v{t1}", f"v_cmp_eq_u32 vcc, -1, v{t0}"]
def retry(A, b, so, back, post=()):
    A("s_mov_b64 exec, vcc")
    for x in ld2(b, so): A(x)
    A(f"""
    s_mov_b64 exec, -1
    s_sub_u32 s{sTMO}, s{sTMO}, 1
    s_cmp_eq_u32 s{sTMO}, 0
    s_cbranch_scc1 L_fail
    """)
    for x in post: A(x)
    A(f"s_branch {back}")

def fin(acc, d0, d1):
    return [f"v_add_f32 v{acc}, v{acc}, v{acc+1}", f"v_add_f32 v{acc+4}, v{acc+4}, v{acc+5}",
            f"v_add_f32 v{acc+2}, v{acc+2}, v{acc+3}", f"v_add_f32 v{acc+6}, v{acc+6}, v{acc+7}",
            f"v_cvt_pk_bf16_f32 v{d0}, v{acc}, v{acc+4}", f"v_cvt_pk_bf16_f32 v{d1}, v{acc+2}, v{acc+6}"]
def vfin():
    a = VA
    return [f"v_add_f32 v{a}, v{a}, v{a+1}", f"v_add_f32 v{a+2}, v{a+2}, v{a+3}",
            f"v_add_f32 v{a+4}, v{a+4}, v{a+5}", f"v_add_f32 v{a+6}, v{a+6}, v{a+7}",
            f"v_cvt_pk_bf16_f32 v{VM}, v{a}, v{a+2}", f"v_cvt_pk_bf16_f32 v{VM+1}, v{a+4}, v{a+6}"]
def mem_reads():
    out = []
    for ks in range(2, 8):
        out.append(f"ds_read_b128 v[{MEM+4*ks}:{MEM+4*ks+3}], v{[0,MA1,MA2,MA3][ks>>1]} offset:{L_MEM+1024*(ks&1)}")
    return out
def ex_store(): return f"buffer_store_dword v{VM}, v{MST}, {srd(WS)}, s{sEX} offen sc1"
def mem_writes(): return [f"ds_write_b128 v{G0}, v[{MEM}:{MEM+3}] offset:{L_MEM}", f"ds_write_b128 v{G0}, v[{MEM+4}:{MEM+7}] offset:{L_MEM+1024}"]

STAMP_REGS = list(range(12, 56, 2)) + list(range(86, 88, 2))
class Stamps:
    def __init__(self, A, opt): self.A, self.on, self.names, self.probe = A, opt.get("trace"), [], opt.get("probe")
    def active(self, name): return self.on and (not self.probe or name in self.probe)
    def __call__(self, name):
        if not self.active(name): return
        r = STAMP_REGS[len(self.names)]; self.names.append(name)
        self.A(f"s_memtime s[{r}:{r+1}]")

def chain_step(A, opt, slow):
    sc = " sc1" if slow else ""
    tg = "s" if slow else "f"
    ST = Stamps(A, opt)
    def STI(name):
        if not ST.active(name): return []
        r = STAMP_REGS[len(ST.names)]; ST.names.append(name); return [f"s_memtime s[{r}:{r+1}]"]
    A(f"L_step_{'slow' if slow else 'fast'}:")
    dup = opt.get("dup", 0)
    if opt.get("tot"): A(f"s_cmp_lg_u32 s{sS}, 3\ns_cbranch_scc1 L_nt{tg}\ns_memtime s[98:99]\ns_memrealtime s[94:95]\nL_nt{tg}:")
    def nops(n):
        while n > 0:
            k = min(16, max(1, n // 4)); A(f"s_nop {k-1}"); n -= 4*k
    def polls(b, so, delays, work, tailv):
        work = list(work)
        for d in delays:
            while d > 0 and work:
                c_, t_ = work.pop(0); A(t_); d -= c_
            if d > 0: nops(d)
            for x in ld2(b, so): A(x)
        for c_, t_ in work: A(t_)
        nops(tailv[0])
        for x in tailv[1]: A(x)
    gp = opt.get("gp", [160, 140]); rp = opt.get("rp", [200, 140])
    nops(gp[0])
    polls(MEM, sMc, [0] + gp[1:], [(4, f"s_mov_b32 s{sTMO}, {TMO}")] + [(opt.get("zc", 9), x) for x in zero_accs()], (opt.get("gw", 0), [f"v_mov_b32 v{TA}, 0"] * opt.get("gwarm", 0)))
    A(f"L_gw{tg}:")
    A(f"s_waitcnt vmcnt({2*(len(gp)-1)})" + ("" if opt.get("sp") else " lgkmcnt(0)"))
    ST("gret")
    for x in chk8(MEM, TA, TB): A(x)
    sk = opt.get("skip", "")
    T = LdsTrack(A, opt.get("verbose") and not slow)
    own = [(x, []) for x in [q_(0,0), q_(0,1), q_(1,0), q_(1,1), k_(0,0), k_(0,1), k_(1,0), k_(1,1), v_(0,0), v_(0,1), v_(1,0), v_(1,1)]]
    qs = [(q_(ks, t), [f"m{ks}", f"w{ks}{t}"]) for ks in range(2, 8) for t in range(2)]
    ks_ = [(k_(ks, t), []) for t in range(2) for ks in range(2, 8)]
    vs = [(v_(ks, t), []) for ks in range(2, 8) for t in range(2)]
    def KXr(kt, j): return KX + 8*j + 4*kt
    sc_ = []
    for j in range(4):
        c0 = "0" if j == 0 else None
        sc_ += [(mf(SX, KXr(0, j), QO + 4*j, c0), [f"q{j}"]), (mf(SX + 4, KXr(1, j), QO + 4*j, c0), []), (mf(SM, KOr[j], QO + 4*j, c0), [f"k{j}"])]
    g = {}
    mw = mem_writes(); mr = [(f"m{ks}", x) for ks, x in zip(range(2, 8), mem_reads())]
    g[0] = [mw[0]]; g[1] = [mw[1], f"s_cbranch_vccnz L_gr{tg}"]
    AB = opt.get("ab", 5)
    g[AB] = ["s_waitcnt lgkmcnt(0)", "s_barrier"] + STI("pastA") + mr[:1]
    w5 = [(f"w5{i_>>1}", x) for i_, x in enumerate(wq_stage([2]))]; w7 = [(f"w7{i_>>1}", x) for i_, x in enumerate(wq_stage([3]))]
    spread(g, AB + 1, mr[1:] + w5)
    spread(g, 15, w7)
    kx = [f"ds_read_b128 v[{KXr(kt,j)}:{KXr(kt,j)+3}], v{KXA} offset:{L_KV+4096*kt+1024*j}" for j in range(4) for kt in range(2)]
    spread(g, 22, kx[:2]); spread(g, 24, kx[2:])
    g[23] = STI("qdone") + g[23]
    f = fin(QA, QA+1, QA+3)
    g[24] = ["s_nop 0"] + g[24]; g[25] = ["s_nop 0"] + g[25]
    for gi, x in zip(range(26, 32), [f[0], f[2], f[1], f[3], f[4], f[5]]): g.setdefault(gi, []).append(x)
    g[32] = [f"ds_write2_b32 v{QW}, v{QA+1}, v{QA+3} offset0:0 offset1:4"]
    fk = fin(KA, KA+1, KA+3)
    g[33] = [fk[0]]; g[34] = [fk[2]]; g[35] = ["s_nop 1"] + STI("kdone")
    g[36] = ["s_nop 2"]
    g[37] = ["s_nop 0", fk[1], fk[3], fk[4], fk[5]]
    g[38] = [f"ds_write2_b32 v{QW}, v{KA+1}, v{KA+3} offset0:128 offset1:132"] + STI("kw")
    qo = [(f"q{j}", f"ds_read_b128 v[{QO+4*j}:{QO+4*j+3}], v{QR} offset:{1024*j}") for j in range(4)]
    ko = [(f"k{j}", f"ds_read_b128 v[{KOr[j]}:{KOr[j]+3}], v{KR} offset:{1024*j}") for j in range(4)]
    vx = [("vx", f"ds_read_b128 v[{VX+4*t}:{VX+4*t+3}], v{TA} offset:{L_KV+8192+1024*t}") for t in range(2)]
    kd = kv_dma(True, True)
    place = dict(e=6, k=[8, 9, 12, 14, 15, 18], p=21, r1="D", r2="E", r3="D"); place.update(opt.get("place", {}))
    side = dict(e=ex_store(), p=f"buffer_load_dword v{PG}, off, {srd(WS)}, s{sPGA} sc1",
                r1=f"buffer_store_dwordx4 v[{NEG}:{NEG+3}], v{G0}, {srd(WS)}, s{sPr} offen{sc}",
                r2=f"buffer_store_dwordx4 v[{NEG}:{NEG+3}], v{G0}, {srd(WS)}, s{sPr} offen offset:1024{sc}",
                r3=f"buffer_store_dword v{NEG}, v{MST}, {srd(WS)}, s{sMr} offen{sc}")
    def ins(gi, x):
        it = g.setdefault(gi, [])
        tx = lambda y: y[1] if isinstance(y, tuple) else y
        pos = 0 if x.startswith("s_") else next((k_i for k_i, y in enumerate(it) if tx(y).startswith("v_")), len(it))
        it.insert(pos, x)
    nside = 0
    for k in "ep":
        if k not in sk: ins(place[k], side[k]); nside += 1
    if "d" not in sk:
        for x, gi in zip(kd, place["k"]): ins(gi, x)
        nside += 4
    if opt.get("dlat"):
        g[place["k"][0]] = STI("d0") + g[place["k"][0]]
        g[33] = ["s_waitcnt vmcnt(0)"] + STI("d1") + g[33]
    g[39] = [f"v_add_u32 v{TA}, s{sW2K}, v{KXA}"]
    g[40] = [f"s_waitcnt vmcnt({nside})", f"v_xor_b32 v{KXA}, 0x4000, v{KXA}"]
    CB = opt.get("cb", 42)
    g[CB] = ["s_waitcnt lgkmcnt(0)", "s_barrier"] + STI("pastC")
    ws_ = [(f"o{i_>>1}", x) for i_, x in enumerate(wo_stage(range(6)))]
    rd = [qo[0], ko[0], qo[1], ko[1], qo[2], ko[2], qo[3], ko[3], vx[0], vx[1]] + ws_[:6]
    at = [CB + i_ for i_ in range(10)] + [53, 54, 56, 57, 59, 59]
    for x, gi in zip(rd, at): g.setdefault(gi, []).append(x)
    vf = vfin()
    vl = vf + [f"v_mov_b32 v{ON}, 0x3f803f80", f"v_mov_b32 v{ON+1}, 0x3f803f80", f"v_mov_b64 v[{ON+2}:{ON+3}], v[{ON}:{ON+1}]", f"v_mov_b32 v{PMA+1}, 0", f"v_mov_b32 v{PMB}, 0"]
    for x, gi in zip(vl, [50, 51, 52, 52, 53, 54, 55, 55, 56, 57, 58]): g.setdefault(gi, []).append(x)
    g[59] = STI("sdone") + g[59]
    sched2(T, own + qs + ks_ + vs + sc_, g, "main")
    s = SX
    A(f"""
    v_max3_f32 v{TA}, v{s}, v{s+1}, v{s+2}
    v_max3_f32 v{TA}, v{TA}, v{s+3}, v{s+4}
    v_max3_f32 v{TB}, v{s+5}, v{s+6}, v{s+7}
    v_max_f32 v{TA}, v{TA}, v{TB}
    v_max3_f32 v{TA}, v{TA}, v{SM}, v{SM+1}
    v_mov_b32 v{TB}, v{TA}
    v_permlane16_swap_b32 v{TA}, v{TB}
    v_max_f32 v{TA}, v{TA}, v{TB}
    v_mov_b32 v{TB}, v{TA}
    v_permlane32_swap_b32 v{TA}, v{TB}
    v_max_f32 v{TA}, v{TA}, v{TB}
    v_mul_f32 v{TA}, s{sNC}, v{TA}
    """)
    ST("max")
    A(f"v_pk_fma_f32 v[{SM}:{SM+1}], v[{SM}:{SM+1}], s[{sCC}:{sCC+1}], v[{TA}:{TB}] op_sel_hi:[1,1,0]")
    for i in range(0, 8, 2): A(f"v_pk_fma_f32 v[{s+i}:{s+i+1}], v[{s+i}:{s+i+1}], s[{sCC}:{sCC+1}], v[{TA}:{TB}] op_sel_hi:[1,1,0]")
    for i in range(2): A(f"v_exp_f32 v{SM+i}, v{SM+i}")
    for i in range(2): A(f"v_exp_f32 v{s+i}, v{s+i}")
    A(f"v_cvt_pk_bf16_f32 v{PMA}, v{SM}, v{SM+1}\nv_cvt_pk_bf16_f32 v{PMB+1}, v{SM}, v{SM+1}")
    ex = [f"v_exp_f32 v{s+i}, v{s+i}" for i in range(8)]
    cv = [f"v_cvt_pk_bf16_f32 v{PX+i}, v{s+2*i}, v{s+2*i+1}" for i in range(4)]
    def mf16c(acc, a, b): return f"v_mfma_f32_16x16x16_bf16 {R(acc,4)}, {R(a,2)}, {R(b,2)}, 0"
    A(ex[2]); A(ex[3])
    A(mf16c(LX, ON, PMA)); A(ex[4]); A(cv[0])
    A(mf16c(OX, VM, PMA)); A(ex[5]); A(cv[1])
    A(mf16c(OX + 4, VM, PMB)); A(ex[6]); A(ex[7]); A(cv[2]); A(cv[3])
    ST("exp")
    T.wait(["vx"])
    A(mf(LX, ON, PX)); T.emit(ws_[6]); A(f"v_mov_b64 v[{NEG}:{NEG+1}], -1")
    A(mf(OX, VX, PX)); T.emit(ws_[7]); A(f"v_mov_b64 v[{NEG+2}:{NEG+3}], -1")
    A(mf(OX + 4, VX + 4, PX)); A(f"v_mov_b64 v[{ZZ}:{ZZ+1}], 0")
    ST("pvm")
    A(f"v_rcp_f32 v{TA}, v{LX}")
    for i in range(0, 8, 2): A(f"v_pk_mul_f32 v[{OX+i}:{OX+i+1}], v[{OX+i}:{OX+i+1}], v[{TA}:{TB}] op_sel_hi:[1,0]")
    for i in range(4): A(f"v_cvt_pk_bf16_f32 v{SM+i}, v{OX+i}, v{OX+4+i}")
    A(f"ds_write_b128 v{OW}, v[{SM}:{SM+3}]")
    A(f"v_mfma_f32_32x32x8_bf16 v[{MEM}:{MEM+15}], v[{ZZ}:{ZZ+1}], v[{ZZ}:{ZZ+1}], 0")
    ST("preD")
    for k, pl in place.items():
        if pl == "D": A(side[k])
    A(f"v_mfma_f32_32x32x8_bf16 v[{MEM+16}:{MEM+31}], v[{ZZ}:{ZZ+1}], v[{ZZ}:{ZZ+1}], 0")
    A("s_waitcnt lgkmcnt(0)\ns_barrier")
    ST("pastD")
    A(f"ds_read_b128 v[{OO}:{OO+3}], v{LB} offset:{L_OB}\nds_read_b128 v[{OO+4}:{OO+7}], v{LB} offset:{L_OB+1024}")
    for k, pl in place.items():
        if pl == "E": A(side[k])
    A(f"s_add_u32 s{sPr}, s{sPc}, s{sH13}")
    A("s_waitcnt lgkmcnt(1)")
    ST("wo0")
    def wo(tau, k2): return sm(MEM + 4*tau, OO + 4*k2, WO_res(tau, k2) if tau < 5 else WOS[2*(tau-5)+k2])
    def wfin(tau):
        a = MEM + 4*tau; d = MEM + 8*(tau >> 1) + (tau & 1)
        return [f"v_add_f32 v{a}, v{a}, v{a+1}", f"v_add_f32 v{a+2}, v{a+2}, v{a+3}", f"v_cvt_pk_bf16_f32 v{d}, v{a}, v{a+2}"]
    def sst(k): return f"buffer_store_dwordx2 v[{MEM+8*k}:{MEM+8*k+1}], v{SCAT}, {srd(WS)}, s{[sPc, sP1, sP2, sP3][k]} offen{sc}"
    ws_ = [x[1] for x in ws_]
    g = {0: ["s_waitcnt lgkmcnt(0)"], 1: ["s_nop 0", ws_[8]], 2: ["s_nop 0", ws_[9]], 3: ["s_nop 0", ws_[10]]}
    for tau in range(6):
        w = wfin(tau); g[2*tau+4] = ["s_nop 0", w[0]]; g[2*tau+5] = ["s_nop 0"] + w[1:]
    g[4][0] = ws_[11]
    g[8][0] = sst(0); g[12][0] = sst(1); g[13][0] = "s_waitcnt lgkmcnt(0)"
    sched(A, [wo(tau, k2) for tau in range(8) for k2 in range(2)], g)
    A(sst(2))
    for x in wfin(6) + wfin(7): A(x)
    A(sst(3))
    ST("scat")
    SEL, RA, RP = MEM + 4, MEM + 20, MEM + 8
    book = f"""s_mov_b32 s{sMr}, s{sMc}
    s_mov_b32 s{sMc}, s{sMn}
    s_add_u32 s{sMn}, s{sMn}, 8192
    s_and_b32 s{sMn}, s{sMn}, 0x7fff
    s_add_u32 s{sPc}, s{sPc}, 0x40000
    s_and_b32 s{sPc}, s{sPc}, 0xfffff
    s_or_b32 s{sPc}, s{sPc}, {WS_P}
    s_add_u32 s{sP1}, s{sPc}, 0x10000
    s_add_u32 s{sP2}, s{sPc}, 0x20000
    s_add_u32 s{sP3}, s{sPc}, 0x30000
    s_add_u32 s{sKV}, s{sKV}, {32*16384}
    s_add_u32 s{sVV}, s{sKV}, 8192
    s_xor_b32 s{sKXD}, s{sKXD}, 0x4000
    s_xor_b32 s{sVXD}, s{sVXD}, 0x4000
    s_add_u32 s{sEX}, s{sEX}, 8192
    s_add_u32 s{sT0}, s{sS}, 3
    s_lshr_b32 s{sKVT}, s{sT0}, 2
    s_min_u32 s{sKVT}, s{sKVT}, 15
    s_mov_b32 s{sPGO}, s{sPGA}
    s_add_u32 s{sS}, s{sS}, 1
    s_add_u32 s{sT0}, s{sS}, 3
    s_and_b32 s{sT0}, s{sT0}, 3
    s_lshl_b32 s{sT0}, s{sT0}, 2
    s_add_u32 s{sPGA}, s{sT0}, s{sPRGKV}""".split("\n")
    if opt.get("trace"): A(f"s_mov_b32 s79, s{sTMO}")
    work = [(11, f"ds_read_b128 v[{SEL}:{SEL+3}], v{LB} offset:{L_SEL}")] + [(11, x) for x in wq_stage([0, 1])] + [(4, x) for x in book]
    nsp = opt.get("sp", 0)
    if nsp:
        work += [(4, "s_waitcnt lgkmcnt(0)"), (4, f"s_add_u32 s{sT0}, s{sVV}, s{sW2K}")]
        work += [(4, f"s_buffer_load_dword s89, {srd(WS)}, s{sT0} offset:{128*i_:#x}") for i_ in range(nsp)]
    polls(RP, sPr, rp, work, (opt.get("rw", 0), [f"v_mov_b32 v{TA}, 0"] * opt.get("rwarm", 0)))
    A(f"L_rw{tg}:")
    A(f"s_waitcnt vmcnt({2*(len(rp)-1)})" + ("" if nsp else " lgkmcnt(0)"))
    ST("rret")
    for x in chk8(RP, TA, TB): A(x)
    A(mf(RA, SEL, RP, "0")); A(mf(RA, SEL, RP + 4))
    A(f"s_cbranch_vccnz L_rr{tg}")
    A(f"v_readfirstlane_b32 s{sT1}, v{PG}")
    A(f"""
    v_add_f32_dpp v{RA}, v{RA}, v{RA} row_shr:4 row_mask:0xf bank_mask:0xf
    v_add_f32_dpp v{RA+1}, v{RA+1}, v{RA+1} row_shr:4 row_mask:0xf bank_mask:0xf
    v_add_f32_dpp v{RA}, v{RA}, v{RA} row_shr:8 row_mask:0xf bank_mask:0xf
    v_add_f32_dpp v{RA+1}, v{RA+1}, v{RA+1} row_shr:8 row_mask:0xf bank_mask:0xf
    v_cvt_pk_bf16_f32 v{VM}, v{RA}, v{RA+1}
    buffer_store_dword v{VM}, v{MST}, {srd(WS)}, s{sMc} offen{sc}
    """)
    ST("red")
    if not opt.get("no_kv_wait"):
        A(f"""
        s_cmp_gt_u32 s{sT1}, s{sKVT}
        s_cbranch_scc0 L_kvw{tg}
        L_kvok{tg}:
        """)
    ST("end")
    if opt.get("trace"):
        A("s_waitcnt lgkmcnt(0)")
        for i in range(len(ST.names)): A(f"v_writelane_b32 v{TA}, s{STAMP_REGS[i]}, {i}")
        A(f"v_writelane_b32 v{TA}, s{sTMO}, 31")
        A(f"v_writelane_b32 v{TA}, s79, 30")
        if not ST.probe or len(ST.probe) > 2: open("stamps.txt", "w").write(" ".join(ST.names))
        A(f"""s_lshl_b32 s{sT0}, s{sS}, 14
        s_lshl_b32 s{sT1}, s{sH}, 9
        s_add_u32 s{sT0}, s{sT0}, s{sT1}
        s_lshl_b32 s{sT1}, s{sW}, 7
        s_add_u32 s{sT0}, s{sT0}, s{sT1}
        s_add_u32 s{sT0}, s{sT0}, {WS_TRC - 16384}
        v_lshrrev_b32 v{TB}, 2, v{LB}
        s_mov_b32 exec_hi, 0
        buffer_store_dword v{TA}, v{TB}, {srd(WS)}, s{sT0} offen
        s_mov_b64 exec, -1""")
    A(f"s_cmp_lt_u32 s{sS}, 63\ns_cbranch_scc1 L_step_{'slow' if slow else 'fast'}\ns_branch L_last")
    A(f"L_gr{tg}:")
    retry(A, MEM, sMc, f"L_gw{tg}", post=[f"v_mov_b64 v[{r}:{r+1}], 0" for r in range(QA, QA+8, 2)])
    A(f"L_rr{tg}:")
    retry(A, RP, sPr, f"L_rw{tg}")
    if not opt.get("no_kv_wait"):
        A(f"""
        L_kvw{tg}:
        buffer_load_dword v{PG}, off, {srd(WS)}, s{sPGO} sc1
        s_sub_u32 s{sTMO}, s{sTMO}, 1
        s_cmp_eq_u32 s{sTMO}, 0
        s_cbranch_scc1 L_fail
        s_waitcnt vmcnt(0)
        v_readfirstlane_b32 s{sT1}, v{PG}
        s_cmp_gt_u32 s{sT1}, s{sKVT}
        s_cbranch_scc0 L_kvw{tg}
        s_branch L_kvok{tg}
        """)

def chain_last(A, opt):
    A("L_last:")
    A(ex_store())
    tl(A, opt, 7, TA)
    if opt.get("tot"):
        A(f"""
        s_memtime s[100:101]
        s_memrealtime s[92:93]
        s_waitcnt lgkmcnt(0)
        s_sub_u32 s100, s100, s98
        s_sub_u32 s92, s92, s94
        v_mov_b32 v{TA}, s100
        v_mov_b32 v{TB}, s92
        s_mov_b64 exec, 1
        buffer_store_dword v{TA}, off, {srd(DBG)}, 0 offset:56
        buffer_store_dword v{TB}, off, {srd(DBG)}, 0 offset:52
        """)
    A("s_branch L_end")

def chain(A, opt):
    chain_init(A, opt)
    chain_step(A, opt, False)
    chain_step(A, opt, True)
    chain_last(A, opt)
```

```python
from asmlib import *
from layout import *
KNAME = "gated_mix__memory_aug_recurrent_mem_tr__swiglu_ffn__prompt_kernel"
sW = 3
WS, DBG, XS, WQ, WK, WV, WO, M0S, WG, WU, WD, GW, OUT = (4, 8, 12, 16, 20, 24, 28, 32, 36, 40, 44, 48, 52)
sXCC, sIDX, sGRP, sTMO = 56, 57, 58, 59
def srd(b): return f"s[{b}:{b+3}]"
TMO = 4000000

def weave(A, mf, oth, per=2, lead=0):
    oth = list(oth)
    for _ in range(lead):
        if oth: A(oth.pop(0))
    for m in mf:
        A(m)
        for _ in range(per):
            if oth: A(oth.pop(0))
    for o in oth: A(o)

def prologue(A, opt):
    if opt.get("tl"): A("s_memrealtime s[100:101]")
    A(f"""
    s_cmp_ge_u32 s2, 256
    s_cbranch_scc1 L_end
    s_load_dwordx2 s[{WS}:{WS+1}], s[0:1], 112
    s_load_dwordx2 s[{DBG}:{DBG+1}], s[0:1], 104
    s_load_dwordx2 s[{XS}:{XS+1}], s[0:1], 0
    s_load_dwordx2 s[{M0S}:{M0S+1}], s[0:1], 8
    s_load_dwordx2 s[{WQ}:{WQ+1}], s[0:1], 16
    s_load_dwordx2 s[{WK}:{WK+1}], s[0:1], 24
    s_load_dwordx2 s[{WV}:{WV+1}], s[0:1], 32
    s_load_dwordx2 s[{WO}:{WO+1}], s[0:1], 40
    s_load_dwordx2 s[{WG}:{WG+1}], s[0:1], 64
    s_load_dwordx2 s[{WU}:{WU+1}], s[0:1], 72
    s_load_dwordx2 s[{WD}:{WD+1}], s[0:1], 80
    s_load_dwordx2 s[{GW}:{GW+1}], s[0:1], 88
    s_load_dwordx2 s[{OUT}:{OUT+1}], s[0:1], 96
    s_getreg_b32 s{sXCC}, hwreg(HW_REG_XCC_ID)
    s_and_b32 s{sXCC}, s{sXCC}, 7
    v_lshrrev_b32 v1, 6, v0
    v_readfirstlane_b32 s{sW}, v1
    """)
    if opt.get("fake_xcc"):
        A(f"s_mul_i32 s{sXCC}, s2, 37\ns_lshr_b32 s{sXCC}, s{sXCC}, 3\ns_and_b32 s{sXCC}, s{sXCC}, 7\ns_and_b32 s60, s2, 3\ns_cmp_eq_u32 s60, 1\ns_cselect_b32 s{sXCC}, 5, s{sXCC}")
    sizes = {WS: 0x10000000, DBG: 256, XS: 2097152, M0S: 8192, WQ: 4194304, WK: 4194304, WV: 4194304, WO: 4194304,
             WG: 512*1376*2, WU: 512*1376*2, WD: 512*1376*2, GW: 1024, OUT: 2097152}
    for b, n in sizes.items():
        A(f"s_mov_b32 s{b+2}, {n}\ns_mov_b32 s{b+3}, 0x20000")
    A(f"""
    s_waitcnt lgkmcnt(0)
    s_cmp_lg_u32 s{sW}, 0
    s_cbranch_scc1 L_noticket
    s_lshl_b32 s60, s{sXCC}, 2
    v_mov_b32 v4, 1
    s_mov_b64 exec, 1
    buffer_atomic_add v4, off, {srd(DBG)}, s60 sc0
    s_mov_b64 exec, -1
    L_noticket:
    s_cmp_lg_u32 s2, 0
    s_cbranch_scc1 L_nozero
    v_lshlrev_b32 v2, 4, v0
    v_mov_b32 v8, 0
    v_mov_b32 v9, 0
    v_mov_b32 v10, 0
    v_mov_b32 v11, 0
    s_mov_b32 s60, {WS_PRG}
    s_mov_b32 s61, {WS_PRG + 0x1000}
    s_mov_b32 s62, {WS_PRG + 0x2000}
    s_mov_b32 s63, {WS_PRG + 0x3000}
    buffer_store_dwordx4 v[8:11], v2, {srd(WS)}, s60 offen sc1
    buffer_store_dwordx4 v[8:11], v2, {srd(WS)}, s61 offen sc1
    buffer_store_dwordx4 v[8:11], v2, {srd(WS)}, s62 offen sc1
    buffer_store_dwordx4 v[8:11], v2, {srd(WS)}, s63 offen sc1
    L_nozero:
    s_waitcnt vmcnt(0)
    s_cmp_lg_u32 s{sW}, 0
    s_cbranch_scc1 L_noticket2
    v_mov_b32 v5, 0
    s_mov_b64 exec, 1
    ds_write_b32 v5, v4
    s_mov_b64 exec, -1
    s_waitcnt lgkmcnt(0)
    L_noticket2:
    s_barrier
    v_mov_b32 v5, 0
    ds_read_b32 v4, v5
    s_cmp_lg_u32 s2, 0
    s_cbranch_scc1 L_nozero2
    v_mov_b32 v6, 1
    s_mov_b64 exec, 1
    buffer_store_dword v6, off, {srd(DBG)}, 0 offset:{DBG_INIT} sc1
    s_mov_b64 exec, -1
    L_nozero2:
    s_waitcnt lgkmcnt(0)
    v_readfirstlane_b32 s{sIDX}, v4
    s_mov_b32 s{sGRP}, s{sXCC}
    s_barrier
    v_and_b32 v0, 63, v0
    s_cmp_lt_u32 s{sIDX}, 32
    s_cbranch_scc0 L_overflow
    L_role:
    """)
    tl(A, opt, 1, 4)
    if opt.get('tl'):
        A(f"v_mov_b32 v4, s100\ns_lshl_b32 s96, s{sGRP}, 5\ns_add_u32 s96, s96, s{sIDX}\ns_lshl_b32 s96, s96, 6\ns_add_u32 s96, s96, {WS_TRC + 2*MB}\nbuffer_store_dword v4, off, {srd(WS)}, s96\ns_waitcnt vmcnt(0)")

def overflow(A, opt):
    A(f"""
    L_overflow:
    s_mov_b32 s{sTMO}, {TMO}
    v_lshlrev_b32 v2, 2, v0
    L_ovf_wait:
    buffer_load_dword v3, v2, {srd(DBG)}, 0 offen sc1
    s_sub_u32 s{sTMO}, s{sTMO}, 1
    s_cmp_eq_u32 s{sTMO}, 0
    s_cbranch_scc1 L_fail
    s_waitcnt vmcnt(0)
    s_mov_b32 s60, 0
    """)
    for x in range(8):
        A(f"v_readlane_b32 s{62+x}, v3, {x}\ns_add_u32 s60, s60, s{62+x}")
    A(f"""
    s_cmp_lt_u32 s60, 256
    s_cbranch_scc1 L_ovf_wait
    s_cmp_lg_u32 s{sW}, 0
    s_cbranch_scc1 L_ovf_t
    v_mov_b32 v4, 1
    v_mov_b32 v5, 0
    s_mov_b64 exec, 1
    buffer_atomic_add v4, off, {srd(DBG)}, 0 offset:{DBG_OVF} sc0
    s_waitcnt vmcnt(0)
    ds_write_b32 v5, v4
    s_mov_b64 exec, -1
    s_waitcnt lgkmcnt(0)
    L_ovf_t:
    s_barrier
    v_mov_b32 v5, 0
    ds_read_b32 v4, v5
    s_waitcnt lgkmcnt(0)
    v_readfirstlane_b32 s61, v4
    s_barrier
    """)
    for x in range(8):
        A(f"""
        s_min_u32 s70, s{62+x}, 32
        s_sub_u32 s71, 32, s70
        s_mov_b32 s{sGRP}, {x}
        s_add_u32 s{sIDX}, s70, s61
        s_cmp_lt_u32 s61, s71
        s_cbranch_scc1 L_role
        s_sub_u32 s61, s61, s71
        """)
    A("s_branch L_end")

def wait_init(A, tag, vt=3):
    A(f"""
    s_mov_b32 s{sTMO}, {TMO}
    L_wi_{tag}:
    buffer_load_dword v{vt}, off, {srd(DBG)}, 0 offset:{DBG_INIT} sc1
    s_sub_u32 s{sTMO}, s{sTMO}, 1
    s_cmp_eq_u32 s{sTMO}, 0
    s_cbranch_scc1 L_fail
    s_waitcnt vmcnt(0)
    v_readfirstlane_b32 s85, v{vt}
    s_cmp_eq_u32 s85, 0
    s_cbranch_scc1 L_wi_{tag}
    """)

def epilogue(A):
    A(f"""
    L_fail:
    s_waitcnt vmcnt(0) lgkmcnt(0)
    s_mov_b64 exec, -1
    s_lshl_b32 s60, s{sGRP}, 8
    s_add_u32 s60, s60, s{sIDX}
    s_add_u32 s60, s60, 0x10000
    v_mov_b32 v4, s60
    s_mov_b64 exec, 1
    buffer_store_dword v4, off, {srd(DBG)}, 0 offset:{DBG_ERR} sc1
    L_end:
    s_endpgm
    """)

def tl(A, opt, slot, vt, cond=None):
    if not opt.get("tl"): return
    lab = A.newlabel("L_tl")
    if cond: A(f"s_lshr_b32 s96, s{cond[0]}, 1\ns_cmp_lg_u32 s96, {cond[1]}\ns_cbranch_scc1 {lab}")
    A(f"""
    s_cmp_lg_u32 s{sW}, 0
    s_cbranch_scc1 {lab}
    s_memrealtime s[96:97]
    s_waitcnt lgkmcnt(0)
    v_mov_b32 v{vt}, s96
    s_lshl_b32 s96, s{sGRP}, 5
    s_add_u32 s96, s96, s{sIDX}
    s_lshl_b32 s96, s96, 6
    s_add_u32 s96, s96, {WS_TRC + 2*MB + 4*slot}
    s_mov_b64 exec, 1
    buffer_store_dword v{vt}, off, {srd(WS)}, s96
    s_mov_b64 exec, -1
    {lab}:
    """)

def tlseq(A, opt, vt, sidx, shift, area):
    if not opt.get("tl"): return
    lab = A.newlabel("L_ts")
    A(f"""
    s_cmp_lg_u32 s{sW}, 0
    s_cbranch_scc1 {lab}
    s_memrealtime s[96:97]
    s_waitcnt lgkmcnt(0)
    v_mov_b32 v{vt}, s96
    s_lshl_b32 s96, s{sGRP}, 5
    s_add_u32 s96, s96, s{sIDX}
    s_lshl_b32 s96, s96, 8
    s_lshr_b32 s97, s{sidx}, {shift}
    s_lshl_b32 s97, s97, 2
    s_add_u32 s96, s96, s97
    s_add_u32 s96, s96, {WS_TRC + (4+area)*MB}
    s_mov_b64 exec, 1
    buffer_store_dword v{vt}, off, {srd(WS)}, s96
    s_mov_b64 exec, -1
    {lab}:
    """)
```

```python
MB = 1 << 20
WS_M   = 0x000000
WS_EX  = 0x080000
WS_PRG = 0x010000
WS_P   = 0x100000
WS_KV  = 0x200000
WS_KM  = WS_KV + 32 * MB
WS_OH  = WS_KM + 16 * MB
OH_TT  = 176 * 1024
WS_TRC = WS_OH + 24 * MB
PRG_KV = 0x0000
PRG_C  = 0x1000
PRG_O  = 0x2000
PRG_H  = 0x3000
PRG_BYTES = 0x4000
DBG_CNT = 0
DBG_OVF = 32
DBG_INIT = 36
DBG_CH  = 40
DBG_ERR = 60
DBG_C0 = 48
```

```python
from common import *
import struct
def f2u(x): return struct.unpack("<I", struct.pack("<f", x))[0]
def mf(acc, a, b, c=None): return f"v_mfma_f32_16x16x32_bf16 {R(acc,4)}, {R(a,4)}, {R(b,4)}, {R(acc,4) if c is None else c}"
def mf16(acc, a, b, c=None): return f"v_mfma_f32_16x16x16_bf16 {R(acc,4)}, {R(a,2)}, {R(b,2)}, {R(acc,4) if c is None else c}"
H0, H1 = 0x8000, 0x18000
sT0, sT1, sT2, sT3 = 73, 74, 75, 76

def lane_decode(A):
    A("""
    v_and_b32 v20, 15, v0               ; n
    v_lshrrev_b32 v21, 4, v0            ; g
    v_and_b32 v22, 3, v0                ; n&3
    v_bfe_u32 v23, v0, 2, 2             ; n>>2
    """)

def x_dma(A, vXG, sSrc, lds_base_sgpr):
    for i in range(8):
        A(f"s_add_u32 m0, s{lds_base_sgpr}, {1024*i - 64*i}")
        A(f"buffer_load_dwordx4 v{vXG}, {srd(XS)}, s{sSrc} offen offset:{64*i} lds")

def load_weights(A, mats, rs, sCol, dst, extra_before, vD0=26, vD1=27, vTR=28, vT=29, defer=0):
    A(f"""
    s_lshl_b32 s{sT0}, s{sW}, 4
    v_add_u32 v24, s{sT0}, v21
    s_mov_b32 s{sT0}, {rs}
    v_mul_lo_u32 v24, v24, s{sT0}
    v_add_u32 v24, s{sCol}, v24
    v_lshlrev_b32 v25, 1, v21
    v_xor_b32 v25, v25, v20
    v_lshl_add_u32 v{vD0}, v25, 4, v24
    v_xor_b32 v25, 8, v25
    v_lshl_add_u32 v{vD1}, v25, 4, v24
    v_lshl_add_u32 v24, v21, 3, v23
    v_lshlrev_b32 v24, 8, v24
    v_and_b32 v25, 1, v22
    v_lshl_add_u32 v24, v25, 3, v24
    v_and_b32 v25, 1, v21
    v_lshlrev_b32 v25, 3, v25
    v_lshl_add_u32 v25, v23, 1, v25
    v_lshrrev_b32 v{vT}, 1, v22
    s_lshl_b32 s{sT0}, s{sW}, 2
    v_add_u32 v{vT}, s{sT0}, v{vT}
    v_xor_b32 v25, v25, v{vT}
    v_lshl_add_u32 v{vTR}, v25, 4, v24
    s_lshl_b32 s{sT1}, s{sW}, 12
    """)
    groups = [(mi, hf) for mi in range(len(mats)) for hf in range(2)]
    def dma(gi):
        mi, hf = groups[gi]
        hb = H0 if gi % 2 == 0 else H1
        for ch in range(4):
            for i in range(4):
                A(f"s_add_u32 m0, s{sT1}, {hb + ch*16384 + i*1024}")
                A(f"s_mov_b32 s{sT0}, {((4*hf+ch)*64 + 4*i) * rs}")
                A(f"buffer_load_dwordx4 v{vD0 if i < 2 else vD1}, {srd(mats[mi])}, s{sT0} offen lds")
    def trs(gi):
        mi, hf = groups[gi]
        for t in range(2):
            A(f"v_xor_b32 v{vT}, {32*t}, v{vTR}\nv_add_u32 v{vT}, {H0 if gi % 2 == 0 else H1}, v{vT}")
            for ch in range(4):
                for h2 in range(2):
                    for q1 in range(2):
                        A(f"ds_read_b64_tr_b16 {R(dst(mi, 8*hf+2*ch+h2, t)+2*q1, 2)}, v{vT} offset:{ch*16384 + h2*8192 + q1*1024}")
    dma(0); dma(1)
    for gi in range(len(groups) - defer):
        A(f"s_waitcnt vmcnt({16 if gi + 1 < len(groups) else 0})\ns_barrier")
        trs(gi)
        A("s_waitcnt lgkmcnt(0)\ns_barrier")
        if gi + 2 < len(groups): dma(gi + 2)
    def finish():
        for gi in range(len(groups) - defer, len(groups)): trs(gi)
        A("s_waitcnt lgkmcnt(0)\ns_barrier")
    return finish

def flag(A, vT, sVal, sAddr):
    lab = A.newlabel("L_fl")
    A(f"s_cmp_lg_u32 s{sW}, 0\ns_cbranch_scc1 {lab}")
    A(f"v_mov_b32 v{vT}, s{sVal}\ns_mov_b64 exec, 1\nbuffer_store_dword v{vT}, off, {srd(WS)}, s{sAddr} sc1\ns_mov_b64 exec, -1\n{lab}:")

def arole(A, opt):
    LB, XG, XR, QWr, QRd, G0, MW, MR, NINF, KMW = 0, 1, 2, 3, 4, 5, 6, 7, 8, 9
    T0, T1 = 10, 11
    PSEL = 124
    ONES = 12
    ACC = 16
    XF = 64
    XB, QK0, MEMF, KMF = 0x0, 0x10000, 0x20000, 0x24000
    sH, sC_, sI, sXS, sXL, sKV, sPKV, sPO, sEX, sOH, sC, sNC, sLO, sHI, sCNT = 60, 61, 62, 63, 64, 65, 66, 67, 68, 69, 70, 71, 72, 77, 78
    sM0, sML = 86, 94
    def Wf(mi, kk, t): return 128 + 128*mi + 8*kk + 4*t
    A(f"""
    L_arole:
    s_sub_u32 s{sH}, s{sGRP}, 1
    s_lshl_b32 s{sH}, s{sH}, 2
    s_cmp_eq_u32 s{sGRP}, 6
    s_cselect_b32 s{sH}, 24, s{sH}
    s_lshr_b32 s{sT0}, s{sIDX}, 2
    s_add_u32 s{sH}, s{sH}, s{sT0}
    s_and_b32 s{sC_}, s{sIDX}, 3
    """)
    lane_decode(A)
    A(f"""
    v_lshlrev_b32 v{XG}, 10, v20
    v_lshl_add_u32 v{XG}, v21, 4, v{XG}
    s_lshr_b32 s{sT0}, s{sW}, 1
    s_lshl_b32 s{sT0}, s{sT0}, 14
    s_and_b32 s{sT1}, s{sW}, 1
    s_lshl_b32 s{sT1}, s{sT1}, 9
    s_add_u32 s{sT0}, s{sT0}, s{sT1}
    v_add_u32 v{XG}, s{sT0}, v{XG}
    s_lshl_b32 s{sXS}, s{sC_}, 15
    s_lshl_b32 s{sXL}, s{sW}, 13
    """)
    x_dma(A, XG, sXS, sXL)
    A(f"s_lshl_b32 s{sT2}, s{sH}, 8")
    finish_w = load_weights(A, [WK, WV, WQ], 8192, sT2, Wf, 8, vTR=126, vT=127, defer=2)
    A(f"""
    s_add_u32 s{sXS}, s{sXS}, {4*32768}
    s_xor_b32 s{sXL}, s{sXL}, 0x8000
    ; masks
    v_lshlrev_b32 v24, 2, v21
    """)
    for i in range(4):
        A(f"v_add_u32 v25, {i}, v24\nv_cmp_le_u32 s[{sM0+2*i}:{sM0+2*i+1}], v25, v20")
    c = (128 ** -0.5) * 1.4426950408889634
    A(f"""
    s_mov_b32 s{sML}, -1
    s_mov_b32 s{sML+1}, 0
    s_mov_b32 s{sC}, {f2u(c):#x}
    s_mov_b32 s{sNC}, {f2u(-c):#x}
    v_and_b32 v24, 1, v20
    v_mov_b32 v{PSEL}, 0x05040100
    v_mov_b32 v25, 0x03020706
    v_cmp_eq_u32 vcc, 1, v24
    v_cndmask_b32 v{PSEL}, v{PSEL}, v25, vcc
    v_lshlrev_b32 v{MW}, 9, v24
    v_lshrrev_b32 v24, 1, v21
    v_lshl_add_u32 v{MW}, v24, 12, v{MW}
    v_lshrrev_b32 v24, 1, v20
    v_lshl_add_u32 v{MW}, v24, 4, v{MW}
    v_and_b32 v24, 1, v21
    v_lshl_add_u32 v{MW}, v24, 8, v{MW}
    s_lshl_b32 s{sT0}, s{sW}, 10
    s_add_u32 s{sT0}, s{sT0}, {MEMF}
    v_add_u32 v{MW}, s{sT0}, v{MW}
    s_lshl_b32 s{sT0}, s{sW}, 12
    s_add_u32 s{sT0}, s{sT0}, {MEMF}
    v_lshlrev_b32 v{LB}, 4, v0
    v_add_u32 v{MR}, {MEMF}, v{LB}
    v_mov_b32 v{XR}, v{LB}
    s_lshl_b32 s{sT1}, s{sW}, 10
    s_add_u32 s{sT2}, s{sT1}, {QK0}
    v_add_u32 v{QWr}, s{sT2}, v{LB}
    v_add_u32 v{QRd}, {QK0}, v{LB}
    s_add_u32 s{sT2}, s{sT1}, {KMF}
    v_add_u32 v{KMW}, s{sT2}, v{LB}
    s_lshl_b32 s{sT1}, s{sW}, 11
    v_add_u32 v{G0}, s{sT1}, v{LB}
    v_mov_b32 v{NINF}, 0xff800000
    v_mov_b32 v{ONES}, 0x3f803f80
    v_mov_b32 v{ONES+1}, 0x3f803f80
    v_mov_b32 v{ONES+2}, 0x3f803f80
    v_mov_b32 v{ONES+3}, 0x3f803f80
    v_add_u32 v125, s{sT0}, v{LB}
    ; scalars
    s_lshl_b32 s{sT0}, s{sC_}, 5
    s_add_u32 s{sT0}, s{sT0}, s{sH}          ; seg*32+h
    s_lshl_b32 s{sKV}, s{sT0}, 14
    s_add_u32 s{sKV}, s{sKV}, {WS_KV}
    s_lshl_b32 s{sPO}, s{sC_}, 6
    s_add_u32 s{sPO}, s{sPO}, {WS_PRG + PRG_C}
    s_lshl_b32 s{sPKV}, s{sH}, 7
    s_lshl_b32 s{sT0}, s{sC_}, 2
    s_add_u32 s{sPKV}, s{sPKV}, s{sT0}
    s_add_u32 s{sPKV}, s{sPKV}, {WS_PRG + PRG_KV}
    s_lshl_b32 s{sEX}, s{sC_}, 13
    s_add_u32 s{sEX}, s{sEX}, {WS_EX}
    s_mul_i32 s{sOH}, s{sC_}, {2*OH_TT}
    s_lshl_b32 s{sT0}, s{sH}, 12
    s_add_u32 s{sOH}, s{sOH}, s{sT0}
    s_lshl_b32 s{sT0}, s{sW}, 10
    s_add_u32 s{sOH}, s{sOH}, s{sT0}
    s_add_u32 s{sOH}, s{sOH}, {WS_OH}
    s_mov_b32 s{sI}, 0
    s_mov_b32 s{sCNT}, 0
    """)
    tl(A, opt, 2, T0)
    KAc = lambda t, tt: ACC + 8*tt + 4*t
    QAc = lambda t, tt: ACC + 16 + 8*tt + 4*t
    VAc = lambda tt, t: ACC + 32 + 8*t + 4*tt
    A("s_branch L_a_proj1")
    A("L_a_proj:")
    A("s_waitcnt vmcnt(8)\ns_barrier")
    A("L_a_proj1:")
    def xr(kk): return [f"ds_read_b128 v[{XF+8*(kk&1)+4*tt}:{XF+8*(kk&1)+4*tt+3}], v{XR} offset:{16384*tt+1024*kk}" for tt in range(2)]
    def xpass(body):
        for x in xr(0): A(x)
        for kk in range(16):
            if kk < 15:
                for x in xr(kk+1): A(x)
            A(f"s_waitcnt lgkmcnt({2 if kk < 15 else 0})")
            c0 = "0" if kk == 0 else None
            for tt in range(2):
                for t in range(2): body(kk, tt, t, XF + 8*(kk&1) + 4*tt, c0)
    def kvb(kk, tt, t, X, c0): A(mf(KAc(t, tt), Wf(0, kk, t), X, c0)); A(mf(VAc(tt, t), X, Wf(1, kk, t), c0))
    xpass(kvb)
    PK = 80
    for tt in range(2):
        for i in range(4): A(f"v_cvt_pk_bf16_f32 v{PK+4*tt+i}, v{KAc(0,tt)+i}, v{KAc(1,tt)+i}")
    for t in range(2):
        for i in range(4): A(f"v_cvt_pk_bf16_f32 v{PK+8+4*t+i}, v{VAc(0,t)+2*i}, v{VAc(0,t)+2*i+1}")
    A(f"s_lshl_b32 s{sT0}, s{sW}, 10\ns_add_u32 s{sT0}, s{sT0}, s{sKV}\ns_add_u32 s{sT1}, s{sT0}, 4096\ns_add_u32 s{sT2}, s{sKV}, 8192")
    A(f"buffer_store_dwordx4 v[{PK}:{PK+3}], v{LB}, {srd(WS)}, s{sT0} offen sc1")
    A(f"buffer_store_dwordx4 v[{PK+4}:{PK+7}], v{LB}, {srd(WS)}, s{sT1} offen sc1")
    A(f"buffer_store_dwordx4 v[{PK+8}:{PK+11}], v{G0}, {srd(WS)}, s{sT2} offen sc1")
    A(f"buffer_store_dwordx4 v[{PK+12}:{PK+15}], v{G0}, {srd(WS)}, s{sT2} offen offset:1024 sc1")
    A(f"s_add_u32 s{sCNT}, s{sCNT}, 1\ns_cmp_eq_u32 s{sCNT}, 1\ns_cbranch_scc0 L_a_q")
    wait_init(A, "a", T0)
    A("s_barrier")
    flag(A, T0, sCNT, sPKV)
    tl(A, opt, 3, T0)
    finish_w()
    x_dma(A, XG, sXS, sXL)
    A(f"""
    s_add_u32 s{sXS}, s{sXS}, {4*32768}
    s_xor_b32 s{sXL}, s{sXL}, 0x8000
    v_mov_b64 v[120:121], 0
    v_mov_b64 v[122:123], 0
    ds_write_b128 v125, v[120:123]
    ds_write_b128 v125, v[120:123] offset:1024
    ds_write_b128 v125, v[120:123] offset:2048
    ds_write_b128 v125, v[120:123] offset:3072
    s_waitcnt lgkmcnt(0)
    L_a_q:
    """)
    xpass(lambda kk, tt, t, X, c0: A(mf(QAc(t, tt), Wf(2, kk, t), X, c0)))
    A("s_waitcnt vmcnt(0)\ns_barrier")
    flag(A, T0, sCNT, sPKV)
    x_dma(A, XG, sXS, sXL)
    for tt in range(2):
        for i in range(4): A(f"v_cvt_pk_bf16_f32 v{PK+16+4*tt+i}, v{QAc(0,tt)+i}, v{QAc(1,tt)+i}")
    for i, off in enumerate([0, 4096, 16384, 20480, 8192, 12288]):
        A(f"ds_write_b128 v{QWr}, v[{PK+4*i}:{PK+4*i+3}] offset:{off}")
    A(f"""
    s_add_u32 s{sXS}, s{sXS}, {4*32768}
    s_xor_b32 s{sXL}, s{sXL}, 0x8000
    v_xor_b32 v{XR}, 0x8000, v{XR}
    s_add_u32 s{sKV}, s{sKV}, {4*32*16384}
    v_xor_b32 v{QWr}, 0x8000, v{QWr}
    s_waitcnt lgkmcnt(0)
    s_barrier
    s_cmp_eq_u32 s{sCNT}, 1
    s_cbranch_scc0 L_a_att
    """)
    if not opt.get("no_ch_wait"):
        A(f"""
        s_mov_b32 s{sTMO}, {TMO}
        L_a_chw:
        buffer_load_dword v{T0}, off, {srd(DBG)}, 0 offset:{DBG_CH} sc1
        s_sub_u32 s{sTMO}, s{sTMO}, 1
        s_cmp_eq_u32 s{sTMO}, 0
        s_cbranch_scc1 L_fail
        s_waitcnt vmcnt(0)
        v_readfirstlane_b32 s{sT0}, v{T0}
        s_cmp_lt_u32 s{sT0}, 128
        s_cbranch_scc1 L_a_chw
        """)
    A("s_branch L_a_proj")
    A("L_a_att:")
    Q, K, S, MB, KMa, VMa, V = 16, 48, 80, 48, 64, 72, 112
    S00, S01, S11, SM0, SM1 = S, S+4, S+8, S+12, S+16
    for i in range(8): A(f"ds_read_b128 v[{Q+4*i}:{Q+4*i+3}], v{QRd} offset:{8192+1024*i}")
    for i in range(4): A(f"ds_read_b128 v[{K+4*i}:{K+4*i+3}], v{QRd} offset:{1024*i}")
    A("s_waitcnt lgkmcnt(0)")
    for i in range(4, 8): A(f"ds_read_b128 v[{K+4*i}:{K+4*i+3}], v{QRd} offset:{1024*i}")
    A(f"s_lshl_b32 s{sT0}, s{sW}, 10\nv_add_u32 v{T0}, s{sT0}, v{QRd}")
    for t in range(2): A(f"ds_read_b128 v[{V+4*t}:{V+4*t+3}], v{T0} offset:{16384+4096*t}")
    for j in range(4):
        c0 = "0" if j == 0 else None
        A(mf(S00, K+4*j, Q+4*j, c0)); A(mf(S01, K+4*j, Q+16+4*j, c0))
    A("s_waitcnt lgkmcnt(0)")
    for j in range(4): A(mf(S11, K+16+4*j, Q+16+4*j, "0" if j == 0 else None))
    EXB = 100
    A(f"""
    s_mov_b32 s{sTMO}, {TMO}
    s_cmp_lg_u32 s{sW}, 0
    s_cbranch_scc1 L_a_pre2
    s_lshl_b32 s{sT0}, s{sH}, 8
    s_add_u32 s{sT0}, s{sT0}, s{sEX}
    s_mov_b64 exec, 1
    L_a_pre:
    buffer_load_dword v{T0}, off, {srd(WS)}, s{sT0} sc1
    s_sub_u32 s{sTMO}, s{sTMO}, 1
    s_cmp_eq_u32 s{sTMO}, 0
    s_cbranch_scc1 L_fail
    s_waitcnt vmcnt(0)
    v_cmp_eq_u32 vcc, -1, v{T0}
    s_cbranch_vccz L_a_pre1
    s_sleep {opt.get("asleep", 4)}
    s_branch L_a_pre
    L_a_pre1:
    s_mov_b64 exec, -1
    L_a_pre2:
    s_barrier
    L_a_poll:
    buffer_load_dwordx4 v[{EXB}:{EXB+3}], v{G0}, {srd(WS)}, s{sEX} offen sc1
    buffer_load_dwordx4 v[{EXB+4}:{EXB+7}], v{G0}, {srd(WS)}, s{sEX} offen offset:1024 sc1
    s_sub_u32 s{sTMO}, s{sTMO}, 1
    s_cmp_eq_u32 s{sTMO}, 0
    s_cbranch_scc1 L_fail
    s_waitcnt vmcnt(0)
    v_max3_u32 v{T0}, v{EXB}, v{EXB+1}, v{EXB+2}
    v_max3_u32 v{T1}, v{EXB+3}, v{EXB+4}, v{EXB+5}
    v_max3_u32 v{T0}, v{T0}, v{EXB+6}, v{EXB+7}
    v_max_u32 v{T0}, v{T0}, v{T1}
    v_cmp_eq_u32 vcc, -1, v{T0}
    s_cbranch_vccz L_a_got
    s_sleep 2
    s_branch L_a_poll
    L_a_got:
    """)
    tl(A, opt, 6, T0)
    for ld in range(2):
        b = EXB + 4*ld; d = 120
        for c_ in range(4): A(f"v_mov_b32_dpp v{d+c_}, v{b+c_} quad_perm:[1,0,3,2] row_mask:0xf bank_mask:0xf")
        for c_ in range(4): A(f"v_perm_b32 v{b+c_}, v{d+c_}, v{b+c_}, v{PSEL}")
        A(f"ds_write_b128 v{MW}, v[{b}:{b+3}] offset:{8192*ld}")
    A("s_waitcnt lgkmcnt(0)\ns_barrier")
    def mr(kk): return f"ds_read_b128 v[{MB+4*(kk&3)}:{MB+4*(kk&3)+3}], v{MR} offset:{1024*kk}"
    for kk in range(3): A(mr(kk))
    for kk in range(16):
        if kk + 3 < 16: A(mr(kk+3))
        A(f"s_waitcnt lgkmcnt({min(3, 15-kk)})")
        c0 = "0" if kk == 0 else None
        M = MB + 4*(kk&3)
        for t in range(2): A(mf(KMa+4*t, Wf(0, kk, t), M, c0))
        for t in range(2): A(mf(VMa+4*t, M, Wf(1, kk, t), c0))
    for i in range(4): A(f"v_cvt_pk_bf16_f32 v{EXB+i}, v{KMa+i}, v{KMa+4+i}")
    A(f"ds_write_b128 v{KMW}, v[{EXB}:{EXB+3}]")
    VMp = 104
    for t in range(2):
        for i in range(2): A(f"v_cvt_pk_bf16_f32 v{VMp+2*t+i}, v{VMa+4*t+2*i}, v{VMa+4*t+2*i+1}")
    for i in range(4):
        A(f"v_cndmask_b32 v{S00+i}, v{NINF}, v{S00+i}, s[{sM0+2*i}:{sM0+2*i+1}]")
        A(f"v_cndmask_b32 v{S11+i}, v{NINF}, v{S11+i}, s[{sM0+2*i}:{sM0+2*i+1}]")
    A("s_waitcnt lgkmcnt(0)\ns_barrier")
    for j in range(4): A(f"ds_read_b128 v[{MB+4*j}:{MB+4*j+3}], v{MR} offset:{KMF-MEMF+1024*j}")
    for j in range(4):
        A(f"s_waitcnt lgkmcnt({3-j})")
        c0 = "0" if j == 0 else None
        A(mf(SM0, MB+4*j, Q+4*j, c0)); A(mf(SM1, MB+4*j, Q+16+4*j, c0))
    M0_, M1_, U0, U1 = 108, 109, 110, 111
    A(f"v_max3_f32 v{M0_}, v{S00}, v{S00+1}, v{S00+2}\nv_max_f32 v{M0_}, v{M0_}, v{S00+3}")
    A(f"v_max3_f32 v{M1_}, v{S01}, v{S01+1}, v{S01+2}\nv_max3_f32 v{M1_}, v{M1_}, v{S01+3}, v{S11}")
    A(f"v_max3_f32 v{M1_}, v{M1_}, v{S11+1}, v{S11+2}\nv_max_f32 v{M1_}, v{M1_}, v{S11+3}")
    for i in range(8): A(f"v_cndmask_b32 v{SM0+i}, v{NINF}, v{SM0+i}, s[{sML}:{sML+1}]")
    for m, sm_ in ((M0_, SM0), (M1_, SM1)):
        A(f"v_max3_f32 v{m}, v{m}, v{sm_}, v{sm_+1}\nv_max3_f32 v{m}, v{m}, v{sm_+2}, v{sm_+3}")
    for sw in ("16", "32"):
        A(f"v_mov_b32 v{U0}, v{M0_}\nv_mov_b32 v{U1}, v{M1_}")
        A(f"v_permlane{sw}_swap_b32 v{M0_}, v{U0}\nv_permlane{sw}_swap_b32 v{M1_}, v{U1}")
        A(f"v_max_f32 v{M0_}, v{M0_}, v{U0}\nv_max_f32 v{M1_}, v{M1_}, v{U1}")
    A(f"v_mul_f32 v{M0_}, s{sNC}, v{M0_}\nv_mul_f32 v{M1_}, s{sNC}, v{M1_}")
    for b, m in ((S00, M0_), (S01, M1_), (S11, M1_), (SM0, M0_), (SM1, M1_)):
        for i in range(4): A(f"v_fma_f32 v{b+i}, v{b+i}, s{sC}, v{m}")
    for i in range(20): A(f"v_exp_f32 v{S+i}, v{S+i}")
    P = 16
    for d, b in ((16, S00), (20, S01), (22, S11), (24, SM0), (26, SM1)):
        A(f"v_cvt_pk_bf16_f32 v{d}, v{b}, v{b+1}\nv_cvt_pk_bf16_f32 v{d+1}, v{b+2}, v{b+3}")
    O, L = 32, 48
    A(mf16(L, ONES, 16, "0")); A(mf(L+4, ONES, 20, "0"))
    for t in range(2): A(mf16(O+4*t, V+4*t, 16, "0")); A(mf(O+8+4*t, V+4*t, 20, "0"))
    A(mf16(L, ONES, 24)); A(mf16(L+4, ONES, 26))
    for t in range(2): A(mf16(O+4*t, VMp+2*t, 24)); A(mf16(O+8+4*t, VMp+2*t, 26))
    A(f"v_rcp_f32 v{U0}, v{L}\nv_rcp_f32 v{U1}, v{L+4}")
    for tt in range(2):
        for i in range(8): A(f"v_mul_f32 v{O+8*tt+i}, v{O+8*tt+i}, v{U1 if tt else U0}")
        for i in range(4): A(f"v_cvt_pk_bf16_f32 v{56+4*tt+i}, v{O+8*tt+2*i}, v{O+8*tt+2*i+1}")
        if tt: A(f"s_add_u32 s{sT0}, s{sOH}, {OH_TT}")
        A(f"buffer_store_dwordx4 v[{56+4*tt}:{59+4*tt}], v{LB}, {srd(WS)}, s{sT0 if tt else sOH} offen sc1")
    A(f"""
    s_add_u32 s{sI}, s{sI}, 1
    s_add_u32 s{sEX}, s{sEX}, {4*8192}
    s_add_u32 s{sOH}, s{sOH}, {8*OH_TT}
    v_xor_b32 v{QRd}, 0x8000, v{QRd}
    s_waitcnt vmcnt(0)
    s_barrier
    """)
    A(f"""
    s_cmp_lg_u32 s{sW}, 0
    s_cbranch_scc1 L_a_arr
    v_mov_b32 v{T0}, 1
    s_mov_b64 exec, 1
    buffer_atomic_add v{T0}, off, {srd(WS)}, s{sPO} sc0
    s_waitcnt vmcnt(0)
    v_readfirstlane_b32 s{sT0}, v{T0}
    s_cmp_lg_u32 s{sT0}, 31
    s_cbranch_scc1 L_a_arr1
    s_add_u32 s{sT0}, s{sPO}, {PRG_O - PRG_C}
    buffer_store_dword v{T0}, off, {srd(WS)}, s{sT0} sc1
    L_a_arr1:
    s_mov_b64 exec, -1
    L_a_arr:
    s_add_u32 s{sPO}, s{sPO}, 256
    """)
    tlseq(A, opt, T0, sI, 0, 0)
    A(f"""
    s_cmp_lt_u32 s{sCNT}, 16
    s_cbranch_scc1 L_a_proj
    s_cmp_lt_u32 s{sI}, 16
    s_cbranch_scc1 L_a_att
    """)
    tl(A, opt, 7, T0)
    A("s_branch L_end")

def frole(A, opt):
    LB, XG, XR, T0 = 0, 1, 2, 3
    ACC, XF = 16, 64
    sFG, sCF, sXS, sXL, sOH, sPH, sCNT, sNL = 60, 61, 63, 64, 69, 67, 78, 70
    def Wf(mi, kk, t): return 256 + 128*mi + 8*kk + 4*t
    A(f"""
    L_frole:
    s_cmp_ge_u32 s{sIDX}, 22
    s_cbranch_scc1 L_end
    s_cmp_ge_u32 s{sIDX}, 11
    s_cselect_b32 s{sFG}, 1, 0
    s_mul_i32 s{sT0}, s{sFG}, 11
    s_sub_u32 s{sCF}, s{sIDX}, s{sT0}
    """)
    lane_decode(A)
    A(f"""
    v_lshlrev_b32 v{XG}, 10, v20
    v_lshl_add_u32 v{XG}, v21, 4, v{XG}
    s_lshr_b32 s{sT0}, s{sW}, 1
    s_lshl_b32 s{sT0}, s{sT0}, 14
    s_and_b32 s{sT1}, s{sW}, 1
    s_lshl_b32 s{sT1}, s{sT1}, 9
    s_add_u32 s{sT0}, s{sT0}, s{sT1}
    v_add_u32 v{XG}, s{sT0}, v{XG}
    s_lshl_b32 s{sXS}, s{sFG}, 15
    s_lshl_b32 s{sXL}, s{sW}, 13
    """)
    x_dma(A, XG, sXS, sXL)
    A(f"s_lshl_b32 s{sT2}, s{sCF}, 8")
    load_weights(A, [WG, WU], 2752, sT2, Wf, 8)
    A(f"s_add_u32 s{sXS}, s{sXS}, {2*32768}\ns_xor_b32 s{sXL}, s{sXL}, 0x8000")
    x_dma(A, XG, sXS, sXL)
    A(f"""
    s_add_u32 s{sXS}, s{sXS}, {2*32768}
    s_xor_b32 s{sXL}, s{sXL}, 0x8000
    v_lshlrev_b32 v{LB}, 4, v0
    v_mov_b32 v{XR}, v{LB}
    s_mul_i32 s{sOH}, s{sFG}, {2*OH_TT}
    s_lshl_b32 s{sT0}, s{sCF}, 12
    s_add_u32 s{sOH}, s{sOH}, s{sT0}
    s_lshl_b32 s{sT0}, s{sW}, 10
    s_add_u32 s{sOH}, s{sOH}, s{sT0}
    s_add_u32 s{sOH}, s{sOH}, {WS_OH + 128*1024}
    s_lshl_b32 s{sPH}, s{sFG}, 7
    s_lshl_b32 s{sT0}, s{sCF}, 2
    s_add_u32 s{sPH}, s{sPH}, s{sT0}
    s_add_u32 s{sPH}, s{sPH}, {WS_PRG + PRG_H}
    s_mov_b32 s{sNL}, {f2u(-1.4426950408889634):#x}
    s_mov_b32 s{sCNT}, 0
    """)
    tl(A, opt, 2, T0)
    wait_init(A, "f", T0)
    GA = lambda t, tt: ACC + 8*tt + 4*t
    UA = lambda t, tt: ACC + 16 + 8*tt + 4*t
    A("L_f_loop:")
    A("s_waitcnt vmcnt(10)\ns_barrier")
    def xr(kk): return [f"ds_read_b128 v[{XF+8*(kk&1)+4*tt}:{XF+8*(kk&1)+4*tt+3}], v{XR} offset:{16384*tt+1024*kk}" for tt in range(2)]
    for x in xr(0): A(x)
    for kk in range(16):
        if kk < 15:
            for x in xr(kk+1): A(x)
        A(f"s_waitcnt lgkmcnt({2 if kk < 15 else 0})")
        c0 = "0" if kk == 0 else None
        for tt in range(2):
            X = XF + 8*(kk&1) + 4*tt
            for t in range(2):
                A(mf(GA(t, tt), Wf(0, kk, t), X, c0)); A(mf(UA(t, tt), Wf(1, kk, t), X, c0))
    A("s_waitcnt vmcnt(8)\ns_barrier")
    flag(A, T0, sCNT, sPH)
    E = 80
    for i in range(16): A(f"v_mul_f32 v{E+i}, s{sNL}, v{ACC+i}")
    for i in range(16): A(f"v_exp_f32 v{E+i}, v{E+i}")
    for i in range(16): A(f"v_add_f32 v{E+i}, 1.0, v{E+i}")
    for i in range(16): A(f"v_rcp_f32 v{E+i}, v{E+i}")
    for i in range(16): A(f"v_mul_f32 v{ACC+i}, v{ACC+i}, v{ACC+16+i}")
    for i in range(16): A(f"v_mul_f32 v{ACC+i}, v{ACC+i}, v{E+i}")
    for tt in range(2):
        for i in range(4): A(f"v_cvt_pk_bf16_f32 v{96+4*tt+i}, v{ACC+8*tt+2*i}, v{ACC+8*tt+2*i+1}")
    A(f"s_add_u32 s{sT0}, s{sOH}, {OH_TT}")
    A(f"buffer_store_dwordx4 v[96:99], v{LB}, {srd(WS)}, s{sOH} offen sc1")
    A(f"buffer_store_dwordx4 v[100:103], v{LB}, {srd(WS)}, s{sT0} offen sc1")
    x_dma(A, XG, sXS, sXL)
    A(f"""
    s_add_u32 s{sXS}, s{sXS}, {2*32768}
    s_xor_b32 s{sXL}, s{sXL}, 0x8000
    v_xor_b32 v{XR}, 0x8000, v{XR}
    s_add_u32 s{sOH}, s{sOH}, {4*OH_TT}
    s_add_u32 s{sCNT}, s{sCNT}, 1
    s_cmp_lt_u32 s{sCNT}, 32
    s_cbranch_scc1 L_f_loop
    s_waitcnt vmcnt(0)
    s_barrier
    """)
    flag(A, T0, sCNT, sPH)
    tl(A, opt, 7, T0)
    A("s_branch L_end")

def orole(A, opt):
    LB, XG, PA, RW, RR, RL, OA, T0, T1, HL = 0, 1, 2, 3, 4, 5, 6, 7, 8, 9
    ACC = 12
    BUF, NB = 32, 15
    def Wo_(k, t): return 256 + 8*k + 4*t
    def Wd_(k, t): return 152 + 8*k + 4*t
    GWF = 240
    sOG, sCB, sSEG, sO, sHh, sXO, sOUT, sNL, sPAR, sSTG = 60, 61, 62, 63, 64, 65, 66, 70, 67, 68
    A(f"""
    L_orole:
    s_sub_u32 s{sOG}, s{sGRP}, 1
    s_and_b32 s{sCB}, s{sIDX}, 15
    """)
    lane_decode(A)
    A(f"""
    v_lshrrev_b32 v24, 2, v0
    v_lshlrev_b32 v26, 10, v24
    v_lshl_add_u32 v26, v22, 4, v26
    s_lshl_b32 s{sT0}, s{sCB}, 6
    v_add_u32 v26, s{sT0}, v26
    s_lshl_b32 s{sT0}, s{sW}, 20
    v_add_u32 v27, s{sT0}, v26
    s_mul_i32 s{sT0}, s{sW}, {352*1024}
    v_add_u32 v26, s{sT0}, v26
    v_lshl_add_u32 v28, v21, 2, v23
    v_lshlrev_b32 v28, 6, v28
    v_lshl_add_u32 v28, v22, 3, v28
    s_lshl_b32 s{sSTG}, s{sW}, 15
    v_add_u32 v28, s{sSTG}, v28
    s_and_b32 s{sPAR}, s{sCB}, 1
    s_lshl_b32 s{sPAR}, s{sPAR}, 19
    v_lshlrev_b32 v24, 4, v21
    s_lshl_b32 s{sT0}, s{sW}, 8
    """)
    for k in range(4): A(f"buffer_load_dwordx4 v[{GWF+4*k}:{GWF+4*k+3}], v24, {srd(GW)}, s{sT0} offen offset:{64*k}")
    chunks = [(WD, 0, 8), (WD, 8, 3)] + [(WO, 8*i, 8) for i in range(4)]
    def dma(ci):
        mat, k0, nk = chunks[ci]
        for i in range(2*nk):
            A(f"s_add_u32 m0, s{sSTG}, {(ci & 1)*16384 + 1024*i}")
            A(f"s_mov_b32 s{sT0}, {(32*k0 + 16*i) * 1024}")
            if mat == WO: A(f"s_xor_b32 s{sT0}, s{sT0}, s{sPAR}")
            A(f"buffer_load_dwordx4 v{27 if mat == WO else 26}, {srd(mat)}, s{sT0} offen lds")
    dma(0); dma(1)
    for ci, (mat, k0, nk) in enumerate(chunks):
        A(f"s_waitcnt vmcnt({2*chunks[ci+1][2] if ci + 1 < len(chunks) else 0})")
        for k in range(nk):
            for t in range(2):
                for q1 in range(2):
                    d = (Wo_ if mat == WO else Wd_)(k0 + k, t) + 2*q1
                    A(f"ds_read_b64_tr_b16 {R(d,2)}, v28 offset:{(ci&1)*16384 + 2048*k + 1024*q1 + 32*t}")
        A("s_waitcnt lgkmcnt(0)")
        if ci + 2 < len(chunks): dma(ci + 2)
    A(f"""
    s_barrier
    v_lshlrev_b32 v{XG}, 10, v20
    v_lshl_add_u32 v{XG}, v21, 4, v{XG}
    s_lshl_b32 s{sT0}, s{sW}, 8
    v_add_u32 v{XG}, s{sT0}, v{XG}
    v_lshlrev_b32 v{PA}, 2, v0
    s_lshl_b32 s{sT0}, s{sW}, 2
    v_add_u32 v24, s{sT0}, v21               ; token
    v_lshlrev_b32 v{RL}, 4, v24
    v_bfe_u32 v25, v20, 1, 2
    v_lshl_add_u32 v{RR}, v25, 8, v{RL}
    v_lshrrev_b32 v25, 3, v20
    v_lshl_add_u32 v{RR}, v25, 10, v{RR}
    v_and_b32 v25, 1, v20
    v_lshl_add_u32 v{RR}, v25, 3, v{RR}
    v_lshlrev_b32 v{OA}, 10, v24
    v_lshl_add_u32 v{OA}, v20, 2, v{OA}
    s_lshl_b32 s{sT0}, s{sCB}, 6
    v_add_u32 v{OA}, s{sT0}, v{OA}
    v_lshlrev_b32 v{LB}, 4, v0
    s_mul_i32 s{sT0}, s{sW}, 5120
    v_add_u32 v{RW}, s{sT0}, v{LB}
    s_cmp_eq_u32 s{sW}, 3
    s_cselect_b32 s{sT0}, 0x7f000000, 0
    v_add_u32 v{HL}, s{sT0}, v{LB}
    s_lshr_b32 s{sSEG}, s{sOG}, 1
    s_mul_i32 s{sO}, s{sOG}, {OH_TT}
    s_add_u32 s{sO}, s{sO}, {WS_OH}
    s_mul_i32 s{sT0}, s{sW}, {11*1024}
    s_add_u32 s{sHh}, s{sO}, s{sT0}
    s_add_u32 s{sHh}, s{sHh}, {128*1024}
    s_lshl_b32 s{sT0}, s{sW}, 15
    s_add_u32 s{sO}, s{sO}, s{sT0}
    s_lshl_b32 s{sXO}, s{sOG}, 14
    s_mov_b32 s{sNL}, {f2u(-1.4426950408889634):#x}
    """)
    tl(A, opt, 2, T0)
    wait_init(A, "o", T0)
    sHOK, sPOA, sPHA = 71, 72, 77
    def flag_addr():
        return f"""s_lshl_b32 s{sPOA}, s{sSEG}, 6
        s_add_u32 s{sPOA}, s{sPOA}, {WS_PRG + PRG_O}
        s_mov_b32 s{sT3}, 0"""
    def spin(tag, sAddr, nl, sThr, first_loaded):
        A(f"""
        s_mov_b32 s{sTMO}, {TMO}
        s_mov_b32 exec_lo, {(1 << nl) - 1:#x}
        s_mov_b32 exec_hi, 0
        {f"s_branch L_o_{tag}c" if first_loaded else ""}
        L_o_{tag}:
        buffer_load_dword v{T0}, v{PA}, {srd(WS)}, s{sAddr} offen sc1
        s_sub_u32 s{sTMO}, s{sTMO}, 1
        s_cmp_eq_u32 s{sTMO}, 0
        s_cbranch_scc1 L_fail
        s_waitcnt vmcnt(0)
        L_o_{tag}c:
        v_cmp_ge_u32 vcc, s{sThr}, v{T0}
        s_cbranch_vccz L_o_{tag}ok
        s_sleep {opt.get("osleep", 3)}
        s_branch L_o_{tag}
        L_o_{tag}ok:
        s_mov_b64 exec, -1
        """)
    nowait = opt.get("no_oh_wait")
    XH = BUF + 4*NB
    def xh_loads(tag):
        if not nowait:
            A(f"s_lshr_b32 s{sT2}, s{sSEG}, 1\ns_cmp_lt_u32 s{sT2}, s{sHOK}\ns_cbranch_scc1 L_o_hk{tag}")
            spin("h" + tag, sPHA, 11, sT2, False)
            A(f"v_readlane_b32 s{sHOK}, v{T0}, 0")
            for l in range(1, 11): A(f"v_readlane_b32 s{sT0}, v{T0}, {l}\ns_min_u32 s{sHOK}, s{sHOK}, s{sT0}")
            A(f"L_o_hk{tag}:")
        A(flag_addr())
        A(f"buffer_load_dword v{T0}, off, {srd(WS)}, s{sPOA} sc1")
        for k in range(4): A(f"buffer_load_dwordx4 v[{XH+4*k}:{XH+4*k+3}], v{XG}, {srd(XS)}, s{sXO} offen offset:{64*k}")
        for k in range(11):
            if k % 4 == 0 and k: A(f"s_add_u32 s{sT0}, s{sHh}, {1024*k}")
            b = XH + 16 + 4*k
            A(f"buffer_load_dwordx4 v[{b}:{b+3}], v{HL if k == 10 else LB}, {srd(WS)}, s{sHh if k < 4 else sT0} offen offset:{1024*(k%4)} sc1")
    A(f"""
    s_mov_b32 s{sHOK}, 0
    s_and_b32 s{sPHA}, s{sSEG}, 1
    s_lshl_b32 s{sPHA}, s{sPHA}, 7
    s_add_u32 s{sPHA}, s{sPHA}, {WS_PRG + PRG_H}
    """)
    xh_loads("a")
    sO2 = 69
    A(f"""
    s_lshr_b32 s{sPAR}, s{sPAR}, 5
    s_xor_b32 s{sO2}, s{sPAR}, 0x4000
    s_add_u32 s{sO2}, s{sO2}, s{sO}
    s_add_u32 s{sO}, s{sO}, s{sPAR}
    s_mov_b32 s79, 0
    v_mov_b32 v11, 0x10000
    v_mov_b32 v10, -1
    ds_write_b32 v11, v10
    s_waitcnt vmcnt(0) lgkmcnt(0)
    s_barrier
    L_o_task:
    """)
    B = lambda i_: BUF + 4*(i_ % NB)
    def ol(k, force=False):
        if k % 4 == 0 or force: A(f"s_add_u32 s{sT1}, s{sO if k < 16 else sO2}, {1024*(k & 12)}")
        A(f"buffer_load_dwordx4 v[{B(k)}:{B(k)+3}], v{LB}, {srd(WS)}, s{sT1} offen offset:{1024*(k%4)} sc1")
    def hm():
        for k in range(4): A(mf(ACC+16, GWF+4*k, XH+4*k, "0" if k == 0 else None))
        for k in range(11):
            for t in range(2): A(mf(ACC+8+4*t, Wd_(k, t), XH+16+4*k, "0" if k == 0 else None))
    sRDY = 79
    A(f"s_cmp_eq_u32 s{sRDY}, 1\ns_cbranch_scc1 L_o_rdy")
    A("s_waitcnt vmcnt(1)")
    hm()
    if not nowait:
        A(f"s_cmp_lg_u32 s{sW}, 0\ns_cbranch_scc1 L_o_lw")
        spin("o", sPOA, 1, sT3, False)
        A(f"""
        v_mov_b32 v{T0}, s{sSEG}
        ds_write_b32 v11, v{T0}
        s_branch L_o_lwok
        L_o_lw:
        s_mov_b32 s{sTMO}, {TMO*8}
        L_o_lw1:
        ds_read_b32 v{T0}, v11
        s_sub_u32 s{sTMO}, s{sTMO}, 1
        s_cmp_eq_u32 s{sTMO}, 0
        s_cbranch_scc1 L_fail
        s_waitcnt lgkmcnt(0)
        v_readfirstlane_b32 s{sT0}, v{T0}
        s_cmp_ge_i32 s{sT0}, s{sSEG}
        s_cbranch_scc0 L_o_lw1
        L_o_lwok:
        """)
    tl(A, opt, 6, T0)
    for k in range(NB): ol(k)
    A("s_branch L_o_go")
    A("L_o_rdy:")
    A(f"s_waitcnt vmcnt({NB+1})")
    hm()
    A("L_o_go:")
    tlseq(A, opt, 10, sSEG, 1, 0)
    A(f"""
    s_mov_b32 s{sOUT}, s{sXO}
    s_add_u32 s{sSEG}, s{sSEG}, 2
    s_add_u32 s{sHh}, s{sHh}, {4*OH_TT}
    s_add_u32 s{sXO}, s{sXO}, 65536
    """)
    PFK = opt.get("pfk", 17)
    def ostream(pf):
        extra = 0
        for k in range(32):
            issued = min(32, NB + k)
            A(f"s_waitcnt vmcnt({issued - k - 1 + extra})")
            for t in range(2): A(mf(ACC+4*t, Wo_(k, t), B(k), "0" if k == 0 else None))
            if NB + k < 32: ol(NB + k, force=(k == 0))
            if pf and k == PFK - 1:
                xh_loads("b"); extra = 16
    A(f"s_cmp_ge_u32 s{sSEG}, 64\ns_cbranch_scc1 L_o_nopf")
    assert NB + PFK >= 32
    ostream(True)
    A("s_branch L_o_fin\nL_o_nopf:")
    ostream(False)
    A("L_o_fin:")
    A(f"s_add_u32 s{sO}, s{sO}, {4*OH_TT}\ns_add_u32 s{sO2}, s{sO2}, {4*OH_TT}")
    for i_ in range(5): A(f"ds_write_b128 v{RW}, v[{ACC+4*i_}:{ACC+4*i_+3}] offset:{1024*i_}")
    A(f"""
    s_mov_b32 s{sRDY}, 0
    s_cmp_ge_u32 s{sSEG}, 64
    s_cbranch_scc1 L_o_nrdy
    s_waitcnt vmcnt(15)
    v_cmp_ge_u32 vcc, s{sT3}, v{T0}
    s_cbranch_vccnz L_o_nrdy
    s_mov_b32 s{sRDY}, 1
    v_mov_b32 v{T0}, s{sSEG}
    ds_write_b32 v11, v{T0}
    """)
    for k in range(NB): ol(k)
    A("L_o_nrdy:")
    A("s_waitcnt lgkmcnt(0)\ns_barrier")
    F = ACC
    for sw in range(4):
        A(f"ds_read_b64 v[{F+2*sw}:{F+2*sw+1}], v{RR} offset:{5120*sw}")
        A(f"ds_read_b64 v[{F+8+2*sw}:{F+9+2*sw}], v{RR} offset:{5120*sw+2048}")
        A(f"ds_read_b32 v{F+16+sw}, v{RL} offset:{5120*sw+4096}")
    A(f"""
    v_xor_b32 v{RW}, 0x8000, v{RW}
    v_xor_b32 v{RR}, 0x8000, v{RR}
    v_xor_b32 v{RL}, 0x8000, v{RL}
    s_waitcnt lgkmcnt(0)
    v_add_f32 v{F+16}, v{F+16}, v{F+17}
    v_add_f32 v{F+18}, v{F+18}, v{F+19}
    v_add_f32 v{F+16}, v{F+16}, v{F+18}
    v_mul_f32 v{F+16}, s{sNL}, v{F+16}
    v_exp_f32 v{F+16}, v{F+16}
    """)
    for b in (F, F+8):
        for i_ in range(2):
            A(f"v_add_f32 v{b+i_}, v{b+i_}, v{b+2+i_}\nv_add_f32 v{b+4+i_}, v{b+4+i_}, v{b+6+i_}\nv_add_f32 v{b+i_}, v{b+i_}, v{b+4+i_}")
    A(f"""
    v_add_f32 v{F+16}, 1.0, v{F+16}
    v_rcp_f32 v{F+16}, v{F+16}
    v_sub_f32 v{F+17}, 1.0, v{F+16}
    v_mul_f32 v{F+8}, v{F+8}, v{F+17}
    v_mul_f32 v{F+9}, v{F+9}, v{F+17}
    v_fma_f32 v{F}, v{F}, v{F+16}, v{F+8}
    v_fma_f32 v{F+1}, v{F+1}, v{F+16}, v{F+9}
    v_cvt_pk_bf16_f32 v{T1}, v{F}, v{F+1}
    buffer_store_dword v{T1}, v{OA}, {srd(OUT)}, s{sOUT} offen
    """)
    A(f"""
    s_cmp_lt_u32 s{sSEG}, 64
    s_cbranch_scc1 L_o_task
    """)
    dtl(A, opt, 8, T0)
    tl(A, opt, 7, T0)
    A("s_branch L_end")
```

```python
import sys, json
from common import *
import chain as CH
HEADER = open("gated_mix__memory_aug_recurrent_mem_tr__swiglu_ffn__prompt.s.ref").read().split("; Override launch")[0]
def gen(opt):
    A = Asm()
    A.raw(HEADER.rstrip())
    A.raw(f"; @launch kernel={KNAME} grid=(256,1,1) block=(256,1,1) lds=163840" if opt.get("list") else "; @launch grid=(256,1,1) block=(256,1,1) lds=163840")
    A.raw(f'.amdgcn_target "amdgcn-amd-amdhsa--gfx950"\n.text\n.globl {KNAME}\n.p2align 8\n.type {KNAME},@function')
    A.label(KNAME)
    prologue(A, opt)
    roles = opt.get("roles", "CAFO")
    A(f"s_cmp_eq_u32 s{sGRP}, 0\ns_cbranch_scc1 {'L_chain' if 'C' in roles else 'L_end'}")
    A(f"s_cmp_eq_u32 s{sGRP}, 7\ns_cbranch_scc1 {'L_frole' if 'F' in roles else 'L_end'}")
    A(f"s_cmp_ge_u32 s{sGRP}, 5\ns_cbranch_scc1 {'L_arole' if 'A' in roles else 'L_end'}")
    A(f"s_cmp_lt_u32 s{sIDX}, 16\ns_cbranch_scc1 {'L_arole' if 'A' in roles else 'L_end'}")
    A(f"s_branch {'L_orole' if 'O' in roles else 'L_end'}")
    overflow(A, opt)
    epilogue(A)
    if 'C' in roles: CH.chain(A, opt)
    if 'A' in roles or 'F' in roles or 'O' in roles:
        import workers as WK_
        if 'A' in roles: WK_.arole(A, opt)
        if 'F' in roles: WK_.frole(A, opt)
        if 'O' in roles: WK_.orole(A, opt)
    A.raw(kernel_desc(KNAME, 512, 102, 256))
    return A.finalize(verbose=opt.get("verbose", False))
if __name__ == "__main__":
    opt = json.loads(sys.argv[2]) if len(sys.argv) > 2 else {}
    open(sys.argv[1], "w").write(gen(opt))
```

```python
from common import *
L_KV, L_MEM, L_QB, L_OB, L_SEL, L_H0, L_H1 = 0x0, 0x8000, 0xA000, 0xB200, 0xBA00, 0x8000, 0x18000
L_WO, L_WQ = 0xC000, 0x18000
LB, IDX, SCAT, MST, QW, QR, KR, OW, TRQ, TRO, G0, MA1, MA2, MA3, VM, VM1 = range(16)
MEM = 16
QA, KA, VA, SM = 48, 56, 64, 72
TA, TB, PG, KXA = 76, 77, 78, 79
T0, T1 = TA, TB
BIG = 80
SX, OX, KX = 48, 56, BIG
QO, VX = MEM + 8, MEM + 24
KOr = [56, 60, MEM, MEM + 4]
ON, PMA, PMB = 64, 68, 70
LX, PX, ZZ = MEM, MEM + 8, 48
NEG, OO = 52, 64
WOS = [80, 88, 96, 104, 48, 56]
def WQ_res(p, t): return 112 + 8 * (2 * p + t)
def WQ_stg(p, t): return BIG + 16 * (p & 1) + 8 * t
def WO_res(tau, k2): return 176 + 8 * (2 * tau + k2)
def WKf(ks, t): return 256 + 8 * (2 * ks + t)
def WVf(ks, t): return 384 + 8 * (2 * ks + t)
sH, sS, sMc, sMn, sMr, sPc, sPr, sKV, sEX, sC, sNC, sPRGKV, sPRGKM, sT0, sT1, sW1K, sW2K, sOM = 60, 61, 62, 63, 64, 65, 66, 67, 68, 69, 70, 71, 72, 73, 74, 75, 76, 78
sP1, sVV, sKXD, sVXD, sP2, sPGA, sKVT, sPGO, sH13, sP3 = 80, 81, 82, 83, 77, 84, 78, 72, 75, 88
QOFF = [0, 256, 2048, 2304]
QOFW = [0, 512, 8192, 8704]
sCC = 90

def sm(acc, a, b): return f"v_smfmac_f32_16x16x64_bf16 {R(acc,4)}, {R(a,4)}, {R(b,8)}, v{IDX}"
def mf(acc, a, b, c=None): return f"v_mfma_f32_16x16x32_bf16 {R(acc,4)}, {R(a,4)}, {R(b,4)}, {R(acc,4) if c is None else c}"
def mf16(acc, a, b): return f"v_mfma_f32_16x16x16_bf16 {R(acc,4)}, {R(a,2)}, {R(b,2)}, {R(acc,4)}"
def q_(ks, t): return sm(QA + 4*t, MEM + 4*ks, WQ_res(ks >> 1, t) if ks % 2 == 0 else WQ_stg(ks >> 1, t))
def k_(ks, t): return sm(KA + 4*t, MEM + 4*ks, WKf(ks, t))
def v_(ks, t): return sm(VA + 4*t, MEM + 4*ks, WVf(ks, t))

def trq_reads(dst, base_imm, treg, add10000=False):
    out = []
    for p in range(4):
        if p == 0: out.append(f"v_mov_b32 v{treg}, v{TRQ}")
        else:
            out.append(f"v_add_u32 v{treg}, {p*16384}, v{TRQ}")
            out.append(f"v_and_b32 v{treg}, 0xffff, v{treg}")
        if add10000: out.append(f"v_add_u32 v{treg}, 0x10000, v{treg}")
        for t in range(2):
            if t: out.append(f"v_xor_b32 v{treg}, 32, v{treg}")
            for qd in range(4):
                out.append(f"ds_read_b64_tr_b16 {R(dst(p,t)+2*qd,2)}, v{treg} offset:{base_imm+QOFW[qd]}")
    return out
def tro_reads(dst, tps, treg):
    out = []
    for tp in tps:
        out.append(f"v_xor_b32 v{treg}, {32*tp}, v{TRO}")
        for k2 in range(2):
            for qd in range(4):
                out.append(f"ds_read_b64_tr_b16 {R(dst(tp,k2)+2*qd,2)}, v{treg} offset:{32768*k2+QOFF[qd]}")
    return out

def chain_init(A, opt):
    A(f"""
    L_chain:
    s_mov_b32 s{sH}, s{sIDX}
    v_and_b32 v20, 15, v0               ; n
    v_lshrrev_b32 v21, 4, v0            ; g
    v_and_b32 v22, 3, v0                ; n&3 (cc / c)
    v_bfe_u32 v23, v0, 2, 2             ; n>>2 (u / a)
    s_lshl_b32 s{sH13}, s{sH}, 13
    s_lshl_b32 s{sW2K}, s{sW}, 11
    v_lshrrev_b32 v24, 5, v0
    v_lshlrev_b32 v24, 3, v24
    s_lshl_b32 s{sT0}, s{sW}, 1
    v_add_u32 v24, s{sT0}, v24
    v_xor_b32 v24, v24, v20             ; c16
    s_lshl_b32 s{sT0}, s{sW}, 4
    v_add_u32 v25, s{sT0}, v21          ; row 16w + (l>>4)
    v_lshlrev_b32 v27, 10, v25
    v_lshrrev_b32 v28, 3, v24
    v_lshl_add_u32 v27, v28, 8, v27
    v_and_b32 v28, 7, v24
    v_lshl_add_u32 v27, v28, 4, v27
    s_lshl_b32 s{sT0}, s{sH}, 17
    v_add_u32 v27, s{sT0}, v27
    s_and_b32 s{sC}, s{sW}, 1
    s_lshr_b32 s{sT0}, s{sW}, 1
    s_lshl_b32 s{sT0}, s{sT0}, 7
    s_lshl_b32 s{sT1}, s{sC}, 4
    s_add_u32 s{sT0}, s{sT0}, s{sT1}
    v_add_u32 v25, s{sT0}, v21
    v_and_b32 v24, 1, v21
    v_lshlrev_b32 v24, 1, v24
    s_lshl_b32 s{sT1}, s{sC}, 2
    v_add_u32 v24, s{sT1}, v24
    v_xor_b32 v24, v24, v20
    v_lshlrev_b32 v26, 13, v25
    v_lshl_add_u32 v26, v24, 4, v26
    s_lshl_b32 s{sT0}, s{sH}, 8
    v_add_u32 v26, s{sT0}, v26          ; v26: i even
    v_xor_b32 v34, 128, v26             ; v34: i odd
    s_lshl_b32 s{sT1}, s{sW}, 12
    v_lshrrev_b32 v28, 1, v21
    s_lshl_b32 s{sT0}, s{sW}, 1
    v_add_u32 v28, s{sT0}, v28
    v_lshlrev_b32 v28, 10, v28
    v_and_b32 v29, 1, v21
    v_lshl_add_u32 v28, v29, 1, v28
    v_lshl_add_u32 v28, v22, 2, v28
    s_bfe_u32 s{sT0}, s{sH}, 0x10002
    s_lshl_b32 s{sT0}, s{sT0}, 9
    s_lshr_b32 s{sC}, s{sH}, 3
    s_lshl_b32 s{sC}, s{sC}, 6
    s_add_u32 s{sT0}, s{sT0}, s{sC}
    s_bfe_u32 s{sC}, s{sH}, 0x10001
    s_lshl_b32 s{sC}, s{sC}, 8
    s_add_u32 s{sT0}, s{sT0}, s{sC}
    s_and_b32 s{sC}, s{sH}, 1
    s_lshl_b32 s{sC}, s{sC}, 4
    s_add_u32 s{sT0}, s{sT0}, s{sC}
    buffer_load_ushort v30, v28, {srd(M0S)}, s{sT0} offen
    buffer_load_ushort v31, v28, {srd(M0S)}, s{sT0} offen offset:32
    """)
    groups = [(WK, 0), (WK, 1), (WV, 0), (WV, 1), (WO, 0), (WQ, 0), (WO, 1), (WQ, 1)]
    def dma(gi):
        mat, par = groups[gi]
        hb = L_H0 if gi % 2 == 0 else L_H1
        for sl in range(4):
            for i in range(4):
                so = (256*par + 32*sl + 4*i) * 8192 if mat != WO else (sl >> 1) * 65536 + i * 4096 + 512 * (sl & 1) + 128 * par
                A(f"s_add_u32 m0, s{sT1}, {hb + sl*16384 + i*1024}")
                A(f"s_mov_b32 s{sT0}, {so}")
                A(f"buffer_load_dwordx4 v{27 if mat == WO else 34 if i & 1 else 26}, {srd(mat)}, s{sT0} offen lds")
    dma(0)
    A(f"""
    v_and_b32 v28, 1, v0
    v_mov_b32 v{IDX}, 0x4444
    v_mov_b32 v29, 0xeeee
    v_cmp_eq_u32 vcc, 1, v28
    v_cndmask_b32 v{IDX}, v{IDX}, v29, vcc
    ; SCAT = (2w + b)*8192 + g*2048 + h*64 + (n&7)*8
    v_lshrrev_b32 v28, 3, v20
    v_lshlrev_b32 v{SCAT}, 13, v28
    v_lshl_add_u32 v{SCAT}, v21, 11, v{SCAT}
    v_and_b32 v28, 7, v20
    v_lshl_add_u32 v{SCAT}, v28, 3, v{SCAT}
    s_lshl_b32 s{sT0}, s{sW}, 14
    s_lshl_b32 s{sC}, s{sH}, 6
    s_add_u32 s{sT0}, s{sT0}, s{sC}
    v_add_u32 v{SCAT}, s{sT0}, v{SCAT}
    v_lshlrev_b32 v{MST}, 4, v21
    v_lshl_add_u32 v{MST}, v22, 2, v{MST}
    s_lshl_b32 s{sT0}, s{sH}, 8
    s_lshl_b32 s{sC}, s{sW}, 6
    s_add_u32 s{sT0}, s{sT0}, s{sC}
    v_add_u32 v{MST}, s{sT0}, v{MST}
    v_mov_b32 v29, 0x7fffff00
    v_cmp_le_u32 vcc, 12, v20
    v_cndmask_b32 v{MST}, v29, v{MST}, vcc
    v_and_b32 v28, 1, v23
    v_lshlrev_b32 v28, 6, v28
    v_lshlrev_b32 v29, 5, v21
    v_xor_b32 v28, v28, v29
    v_lshl_add_u32 v{QW}, v23, 7, v28
    v_lshl_add_u32 v{QW}, v22, 2, v{QW}
    s_lshl_b32 s{sT0}, s{sW}, 10
    s_add_u32 s{sT0}, s{sT0}, {L_QB}
    v_add_u32 v{QW}, s{sT0}, v{QW}
    v_and_b32 v28, 1, v21
    v_lshlrev_b32 v28, 2, v28
    v_and_b32 v29, 7, v20
    v_xor_b32 v29, v29, v28
    v_lshlrev_b32 v29, 4, v29
    v_lshl_add_u32 v{QR}, v21, 7, v29
    v_add_u32 v{QR}, {L_QB}, v{QR}
    v_lshl_add_u32 v29, v23, 1, v22
    v_and_b32 v29, 7, v29
    v_xor_b32 v29, v29, v28
    v_lshlrev_b32 v29, 4, v29
    v_lshl_add_u32 v{KR}, v21, 7, v29
    v_add_u32 v{KR}, {L_QB+512}, v{KR}
    v_lshlrev_b32 v{OW}, 8, v21
    v_and_b32 v29, 7, v20
    v_lshl_add_u32 v{OW}, v29, 5, v{OW}
    s_lshr_b32 s{sT0}, s{sW}, 1
    s_lshl_b32 s{sT0}, s{sT0}, 10
    s_and_b32 s{sC}, s{sW}, 1
    s_lshl_b32 s{sC}, s{sC}, 4
    s_add_u32 s{sT0}, s{sT0}, s{sC}
    s_add_u32 s{sT0}, s{sT0}, {L_OB}
    v_add_u32 v{OW}, s{sT0}, v{OW}
    v_lshlrev_b32 v28, 12, v23
    v_lshl_add_u32 v28, v21, 9, v28
    v_and_b32 v29, 1, v22
    v_lshl_add_u32 v28, v29, 3, v28
    v_and_b32 v29, 1, v21
    v_lshlrev_b32 v29, 3, v29
    v_lshl_add_u32 v29, v23, 1, v29     ; f2
    v_lshrrev_b32 v32, 1, v22           ; cc>>1
    s_and_b32 s{sT0}, s{sW}, 1
    s_lshl_b32 s{sT0}, s{sT0}, 3
    v_add_u32 v33, s{sT0}, v32
    v_xor_b32 v33, v33, v29
    v_lshl_add_u32 v{TRO}, v33, 4, v28
    s_lshr_b32 s{sT0}, s{sW}, 1
    s_lshl_b32 s{sT0}, s{sT0}, 14
    s_add_u32 s{sT0}, s{sT0}, {L_H0}
    v_add_u32 v{TRO}, s{sT0}, v{TRO}
    v_and_b32 v28, 1, v23
    v_lshrrev_b32 v29, 1, v23
    v_lshl_add_u32 v33, v28, 4, v29
    v_lshl_add_u32 v33, v21, 2, v33
    v_lshlrev_b32 v33, 8, v33
    v_lshl_add_u32 v29, v28, 1, v29
    v_and_b32 v28, 1, v21
    v_lshl_add_u32 v29, v28, 2, v29
    v_lshlrev_b32 v29, 1, v29
    s_lshl_b32 s{sT0}, s{sW}, 2
    v_add_u32 v28, s{sT0}, v32
    v_xor_b32 v28, v28, v29
    v_lshl_add_u32 v33, v28, 4, v33
    v_and_b32 v28, 1, v22
    v_lshl_add_u32 v{TRQ}, v28, 3, v33
    s_lshl_b32 s{sT0}, s{sW}, 14
    v_add_u32 v{TRQ}, s{sT0}, v{TRQ}
    v_mov_b32 v28, 0x3f80
    v_mov_b32 v29, 0x3f800000
    v_cmp_le_u32 vcc, 8, v20
    v_cndmask_b32 v28, v28, v29, vcc
    v_and_b32 v29, 7, v20
    v_mov_b32 v33, 0
    """)
    for r, val in enumerate([0, 1, 4, 5]):
        A(f"v_cmp_eq_u32 vcc, {val}, v29\nv_cndmask_b32 v{36+r}, v33, v28, vcc")
    A(f"""
    v_lshlrev_b32 v{LB}, 4, v0
    v_add_u32 v{G0}, s{sW2K}, v{LB}
    """)
    for p, r in ((1, MA1), (2, MA2), (3, MA3)):
        A(f"v_add_u32 v{r}, {2048*p}, v{G0}\nv_and_b32 v{r}, 0x1fff, v{r}")
    dma(1)
    A("v_mov_b32 v40, -1\nv_mov_b32 v41, -1\nv_mov_b32 v42, -1\nv_mov_b32 v43, -1")
    A(f"s_lshl_b32 s{sC}, s{sH}, 13")
    for sl in range(4):
        A(f"s_add_u32 s{sT0}, s{sC}, {WS_P + sl*0x40000}")
        A(f"buffer_store_dwordx4 v[40:43], v{G0}, {srd(WS)}, s{sT0} offen sc1")
        A(f"buffer_store_dwordx4 v[40:43], v{G0}, {srd(WS)}, s{sT0} offen offset:1024 sc1")
    for sl in range(1, 4):
        A(f"s_mov_b32 s{sT0}, {WS_M + sl*8192}")
        A(f"buffer_store_dword v40, v{MST}, {srd(WS)}, s{sT0} offen sc1")
    A(f"s_lshl_b32 s{sC}, s{sH}, 14")
    for sl in range(2):
        A(f"s_add_u32 s{sT0}, s{sC}, {WS_EX + sl*8192}")
        A(f"buffer_store_dwordx4 v[40:43], v{G0}, {srd(WS)}, s{sT0} offen sc1")
        A(f"buffer_store_dwordx4 v[40:43], v{G0}, {srd(WS)}, s{sT0} offen offset:1024 sc1")
    A(f"""
    s_waitcnt vmcnt(47)
    v_lshl_or_b32 v{VM}, v31, 16, v30
    v_min_u32 v{VM}, -2, v{VM}
    s_mov_b32 s{sT0}, {WS_M}
    buffer_store_dword v{VM}, v{MST}, {srd(WS)}, s{sT0} offen sc1
    """)
    dsts = [lambda p, t: WKf(2*p, t), lambda p, t: WKf(2*p+1, t), lambda p, t: WVf(2*p, t), lambda p, t: WVf(2*p+1, t), None, WQ_res]
    for gi in range(6):
        n = {0: 32, 1: 16, 2: 17, 4: 17}.get(gi, 16)
        A(f"s_waitcnt vmcnt({n})")
        if gi == 1:
            A(f"v_mov_b32 v30, 1\ns_mov_b64 exec, 1\nbuffer_atomic_add v30, off, {srd(DBG)}, 0 offset:{DBG_CH}\ns_mov_b64 exec, -1")
        A("s_barrier")
        if gi != 4: rd = trq_reads(dsts[gi], L_H0, T0, add10000=(gi % 2 == 1))
        else: rd = tro_reads(WO_res, range(4), T0)
        for r in rd: A(r)
        A("s_waitcnt lgkmcnt(0)\ns_barrier")
        if gi == 3: A(f"buffer_load_dword v35, off, {srd(DBG)}, 0 offset:{DBG_INIT} sc1")
        if gi == 5:
            A(f"v_readfirstlane_b32 s85, v35\ns_cmp_lg_u32 s85, 0\ns_cbranch_scc1 L_c_iok")
            wait_init(A, "c", 35)
            A(f"""
            L_c_iok:
            s_lshl_b32 s{sPRGKV}, s{sH}, 7
            s_add_u32 s{sPRGKV}, s{sPRGKV}, {WS_PRG + PRG_KV}
            v_lshrrev_b32 v33, 2, v{LB}
            buffer_load_dword v35, v33, {srd(DBG)}, 0 offen sc1
            buffer_load_dwordx4 v[20:23], off, {srd(WS)}, s{sPRGKV} sc1
            """)
        dma(gi + 2)
    import struct
    c = (128 ** -0.5) * 1.4426950408889634
    cb = struct.unpack("<I", struct.pack("<f", c))[0]
    A(f"""
    s_mov_b32 s{sC}, {cb:#x}
    s_mov_b32 s{sNC}, {cb | 0x80000000:#x}
    s_mov_b32 s{sCC}, {cb:#x}
    s_mov_b32 s{sCC+1}, {cb:#x}
    s_mov_b32 s{sS}, 0
    s_lshl_b32 s{sKV}, s{sH}, 14
    s_add_u32 s{sKV}, s{sKV}, {WS_KV}
    s_mov_b32 s{sEX}, {WS_EX}
    s_add_u32 s{sKXD}, s{sW2K}, {L_KV}
    s_add_u32 s{sVXD}, s{sW2K}, {L_KV + 8192}
    """)
    A("s_waitcnt vmcnt(16)\ns_barrier")
    TMP = [48, 56, 64, 80, 88, 96, 104, 40]
    for r in tro_reads(lambda tp, k2: WO_res(4, k2) if tp == 0 else TMP[2*(tp-1)+k2], range(4), T0): A(r)
    A(f"s_mul_i32 s{sT0}, s{sW}, 12288\ns_add_u32 s{sT0}, s{sT0}, {L_WO}")
    A("s_waitcnt lgkmcnt(0)\ns_barrier")
    A(f"v_add_u32 v{TRO}, s{sT0}, v{LB}")
    for i in range(12): A(f"ds_write_b128 v{TRO}, v[{TMP[i>>1]+4*(i&1)}:{TMP[i>>1]+4*(i&1)+3}] offset:{1024*i}")
    A(f"ds_write_b128 v{LB}, v[36:39] offset:{L_SEL}")
    A("s_waitcnt lgkmcnt(0)")
    tl(A, opt, 2, T0)
    kvw = not opt.get("no_kv_wait")
    A(f"""
    s_mov_b32 s{sTMO}, {TMO}
    s_branch L_c_chk
    L_c_wait:
    buffer_load_dword v35, v33, {srd(DBG)}, 0 offen sc1
    buffer_load_dwordx4 v[20:23], off, {srd(WS)}, s{sPRGKV} sc1
    s_sub_u32 s{sTMO}, s{sTMO}, 1
    s_cmp_eq_u32 s{sTMO}, 0
    s_cbranch_scc1 L_fail
    s_waitcnt vmcnt(0)
    L_c_chk:
    v_readlane_b32 s{sT0}, v35, {DBG_CH//4}
    v_readlane_b32 s{sT1}, v35, 0
    s_cmp_lt_u32 s{sT0}, 128
    s_cbranch_scc1 L_c_wait
    """)
    if kvw:
        A(f"""
        v_min_u32 v20, v20, v21
        v_min_u32 v20, v20, v22
        v_readfirstlane_b32 s{sT0}, v20
        s_cmp_eq_u32 s{sT0}, 0
        s_cbranch_scc1 L_c_wait
        """)
    tl(A, opt, 3, T0)
    A(f"s_add_u32 s{sVV}, s{sKV}, 8192")
    for x in kv_dma(True, True): A(x)
    A("s_waitcnt vmcnt(4)\ns_barrier")
    for r in trq_reads(lambda p, t: TMP[2*p+t], L_H0, T0, add10000=True): A(r)
    A(f"s_lshl_b32 s{sT0}, s{sW}, 14\ns_add_u32 s{sT0}, s{sT0}, {L_WQ}")
    A("s_waitcnt lgkmcnt(0)\ns_barrier")
    A(f"v_add_u32 v{TRQ}, s{sT0}, v{LB}")
    for i in range(16): A(f"ds_write_b128 v{TRQ}, v[{TMP[i>>1]+4*(i&1)}:{TMP[i>>1]+4*(i&1)+3}] offset:{1024*i}")
    A("s_waitcnt lgkmcnt(0)")
    tl(A, opt, 4, T0)
    dtl(A, opt, 11, T0)
    if opt.get("trace"):
        A(f"""
        s_memrealtime s[12:13]
        s_waitcnt lgkmcnt(0)
        s_add_u32 s14, s12, 1200
        s_and_b32 s14, s14, 0xfffffc00
        s_mov_b32 s{sTMO}, 100000
        L_cal:
        s_memrealtime s[12:13]
        s_memtime s[16:17]
        s_waitcnt lgkmcnt(0)
        s_sub_u32 s{sTMO}, s{sTMO}, 1
        s_cmp_eq_u32 s{sTMO}, 0
        s_cbranch_scc1 L_caldone
        s_sub_u32 s15, s12, s14
        s_cmp_lt_i32 s15, 0
        s_cbranch_scc1 L_cal
        L_caldone:
        v_mov_b32 v{T0}, s12
        v_mov_b32 v{T1}, s16
        s_lshl_b32 s12, s{sH}, 5
        s_lshl_b32 s13, s{sW}, 3
        s_add_u32 s12, s12, s13
        s_add_u32 s12, s12, {WS_TRC + 3*MB}
        buffer_store_dwordx2 v[{T0}:{T1}], off, {srd(WS)}, s12
        """)
    for r in wq_stage([0, 1]): A(r)
    A(f"""
    v_mov_b32 v{KXA}, v{LB}
    s_mov_b32 s{sMc}, {WS_M}
    s_mov_b32 s{sMn}, {WS_M + 8192}
    s_mov_b32 s{sMr}, {WS_M + 3*8192}
    s_mov_b32 s{sPc}, {WS_P}
    s_mov_b32 s{sP1}, {WS_P + 0x10000}
    s_mov_b32 s{sP2}, {WS_P + 0x20000}
    s_mov_b32 s{sP3}, {WS_P + 0x30000}
    s_add_u32 s{sPr}, s{sH13}, {WS_P + 3*0x40000}
    s_add_u32 s{sKV}, s{sKV}, {32*16384}
    s_add_u32 s{sVV}, s{sKV}, 8192
    s_xor_b32 s{sKXD}, s{sKXD}, 0x4000
    s_xor_b32 s{sVXD}, s{sVXD}, 0x4000
    s_add_u32 s{sPGA}, s{sPRGKV}, 12
    s_waitcnt lgkmcnt(0)
    s_cmp_lt_u32 s{sT1}, 32
    s_cbranch_scc1 L_step_slow
    """)

def wq_stage(ps):
    return [f"ds_read_b128 {R(WQ_stg(p,t)+4*hf,4)}, v{TRQ} offset:{1024*(4*p+2*t+hf)}" for p in ps for t in range(2) for hf in range(2)]
def wo_stage(idx):
    return [f"ds_read_b128 {R(WOS[i]+4*hf,4)}, v{TRO} offset:{1024*(2*i+hf)}" for i in idx for hf in range(2)]
def zero_accs():
    return [f"v_mov_b64 v[{r}:{r+1}], 0" for r in range(QA, QA+24, 2)]
def sched(A, mf_list, gaps):
    for x in gaps.get(-1, []): A(x)
    for i, m in enumerate(mf_list):
        A(m)
        for x in gaps.get(i, []): A(x)
    assert max(gaps) < len(mf_list)
class LdsTrack:
    def __init__(self, A, verbose=False): self.A, self.q, self.v = A, [], verbose
    def emit(self, x):
        if isinstance(x, tuple): tag, x = x
        else: tag = None
        if not x: return
        if x.startswith("ds_"): self.q.append(tag)
        if x.startswith("s_waitcnt") and "lgkmcnt(0)" in x: self.q = []
        self.A(x)
    def need(self, tags):
        idx = [i for i, t in enumerate(self.q) if t in tags]
        if not idx: return None
        n = len(self.q) - 1 - max(idx)
        self.q = self.q[max(idx)+1:]
        return f"s_waitcnt lgkmcnt({n})"
    def wait(self, tags):
        w = self.need(tags)
        if w: self.A(w)
def gap_cost(m, items):
    slot = 0; smf = "smfmac" in m; prev_valu = False
    for x in items:
        if isinstance(x, tuple): x = x[1]
        if not x: continue
        if x.startswith("s_nop"): slot += int(x.split()[1]) + 1; prev_valu = False; continue
        slot += 1
        if x.startswith(("ds_", "buffer_")):
            slot = max(slot, 2) + (2 if prev_valu else 0); prev_valu = False
            if "store_dwordx4" in x or "write_b128" in x: slot += 3
            if "store_dwordx2" in x: slot += 1
        elif x.startswith("v_"):
            slot = max(slot, 3 if smf else 2) + (1 if x.startswith(("v_exp", "v_rcp")) else 0); prev_valu = True
        else: prev_valu = False
    return max(0, slot - 3) * 4
def sched2(T, mfs, gaps, name=""):
    assert max(gaps) < len(mfs)
    T.wait(mfs[0][1])
    over = []
    for i, (m, _) in enumerate(mfs):
        T.A(m)
        items = list(gaps.get(i, []))
        nxt = mfs[i+1][1] if i + 1 < len(mfs) else []
        late = [x[0] for x in items if isinstance(x, tuple) and x[0] in nxt]
        assert not late, (i, late)
        w = T.need(nxt)
        if w and not any(isinstance(x, str) and "lgkmcnt(0)" in x for x in items): items = [w] + items
        c = gap_cost(m, items)
        if c: over.append((i, c))
        for x in items: T.emit(x)
    if T.v: print("overflow", name, over, sum(c for _, c in over))
def spread(gaps, start, items, per=1, step=1, front=False):
    items = list(items); i = start
    while items:
        chunk, items = items[:per], items[per:]
        gaps[i] = (chunk + gaps.get(i, [])) if front else (gaps.get(i, []) + chunk)
        i += step
    return i

def kv_dma(k, v):
    out = []
    if k:
        out += [f"s_mov_b32 m0, s{sKXD}", f"buffer_load_dwordx4 v{G0}, {srd(WS)}, s{sKV} offen sc1 lds",
                f"buffer_load_dwordx4 v{G0}, {srd(WS)}, s{sKV} offen offset:1024 sc1 lds"]
    if v:
        out += [f"s_mov_b32 m0, s{sVXD}", f"buffer_load_dwordx4 v{G0}, {srd(WS)}, s{sVV} offen sc1 lds",
                f"buffer_load_dwordx4 v{G0}, {srd(WS)}, s{sVV} offen offset:1024 sc1 lds"]
    return out

def ld2(b, so):
    return [f"buffer_load_dwordx4 v[{b}:{b+3}], v{G0}, {srd(WS)}, s{so} offen sc1",
            f"buffer_load_dwordx4 v[{b+4}:{b+7}], v{G0}, {srd(WS)}, s{so} offen offset:1024 sc1"]
def chk8(b, t0, t1):
    return [f"v_max3_u32 v{t0}, v{b}, v{b+1}, v{b+2}", f"v_max3_u32 v{t1}, v{b+3}, v{b+4}, v{b+5}",
            f"v_max3_u32 v{t0}, v{t0}, v{b+6}, v{b+7}", f"v_max_u32 v{t0}, v{t0}, v{t1}", f"v_cmp_eq_u32 vcc, -1, v{t0}"]
def retry(A, b, so, back, post=()):
    A("s_mov_b64 exec, vcc")
    for x in ld2(b, so): A(x)
    A(f"""
    s_mov_b64 exec, -1
    s_sub_u32 s{sTMO}, s{sTMO}, 1
    s_cmp_eq_u32 s{sTMO}, 0
    s_cbranch_scc1 L_fail
    """)
    for x in post: A(x)
    A(f"s_branch {back}")

def fin(acc, d0, d1):
    return [f"v_add_f32 v{acc}, v{acc}, v{acc+1}", f"v_add_f32 v{acc+4}, v{acc+4}, v{acc+5}",
            f"v_add_f32 v{acc+2}, v{acc+2}, v{acc+3}", f"v_add_f32 v{acc+6}, v{acc+6}, v{acc+7}",
            f"v_cvt_pk_bf16_f32 v{d0}, v{acc}, v{acc+4}", f"v_cvt_pk_bf16_f32 v{d1}, v{acc+2}, v{acc+6}"]
def vfin():
    a = VA
    return [f"v_add_f32 v{a}, v{a}, v{a+1}", f"v_add_f32 v{a+2}, v{a+2}, v{a+3}",
            f"v_add_f32 v{a+4}, v{a+4}, v{a+5}", f"v_add_f32 v{a+6}, v{a+6}, v{a+7}",
            f"v_cvt_pk_bf16_f32 v{VM}, v{a}, v{a+2}", f"v_cvt_pk_bf16_f32 v{VM+1}, v{a+4}, v{a+6}"]
def mem_reads():
    out = []
    for ks in range(2, 8):
        out.append(f"ds_read_b128 v[{MEM+4*ks}:{MEM+4*ks+3}], v{[0,MA1,MA2,MA3][ks>>1]} offset:{L_MEM+1024*(ks&1)}")
    return out
def ex_store(): return f"buffer_store_dword v{VM}, v{MST}, {srd(WS)}, s{sEX} offen sc1"
def mem_writes(): return [f"ds_write_b128 v{G0}, v[{MEM}:{MEM+3}] offset:{L_MEM}", f"ds_write_b128 v{G0}, v[{MEM+4}:{MEM+7}] offset:{L_MEM+1024}"]

STAMP_REGS = list(range(12, 56, 2)) + list(range(86, 88, 2))
class Stamps:
    def __init__(self, A, opt): self.A, self.on, self.names, self.probe = A, opt.get("trace"), [], opt.get("probe")
    def active(self, name): return self.on and (not self.probe or name in self.probe)
    def __call__(self, name):
        if not self.active(name): return
        r = STAMP_REGS[len(self.names)]; self.names.append(name)
        self.A(f"s_memtime s[{r}:{r+1}]")

def chain_step(A, opt, slow):
    sc = " sc1" if slow else ""
    tg = "s" if slow else "f"
    ST = Stamps(A, opt)
    def STI(name):
        if not ST.active(name): return []
        r = STAMP_REGS[len(ST.names)]; ST.names.append(name); return [f"s_memtime s[{r}:{r+1}]"]
    A(f"L_step_{'slow' if slow else 'fast'}:")
    dup = opt.get("dup", 0)
    if opt.get("tot") or opt.get("enc"): A(f"s_cmp_lg_u32 s{sS}, 3\ns_cbranch_scc1 L_nt{tg}\ns_memtime s[98:99]\ns_memrealtime s[94:95]\nL_nt{tg}:")
    def nops(n):
        while n > 0:
            k = min(16, max(1, n // 4)); A(f"s_nop {k-1}"); n -= 4*k
    def polls(b, so, delays, work, tailv):
        work = list(work)
        for d in delays:
            while d > 0 and work:
                c_, t_ = work.pop(0); A(t_); d -= c_
            if d > 0: nops(d)
            for x in ld2(b, so): A(x)
        for c_, t_ in work: A(t_)
        nops(tailv[0])
        for x in tailv[1]: A(x)
    gp = opt.get("gp", [160, 140]); rp = opt.get("rp", [200, 140])
    nops(gp[0])
    polls(MEM, sMc, [0] + gp[1:], [(4, f"s_mov_b32 s{sTMO}, {TMO}")] + [(opt.get("zc", 9), x) for x in zero_accs()], (opt.get("gw", 0), [f"v_mov_b32 v{TA}, 0"] * opt.get("gwarm", 0)))
    A(f"L_gw{tg}:")
    A(f"s_waitcnt vmcnt({2*(len(gp)-1)})" + ("" if opt.get("sp") else " lgkmcnt(0)"))
    ST("gret")
    for x in chk8(MEM, TA, TB): A(x)
    sk = opt.get("skip", "")
    T = LdsTrack(A, opt.get("verbose") and not slow)
    own = [(x, []) for x in [q_(0,0), q_(0,1), q_(1,0), q_(1,1), k_(0,0), k_(0,1), k_(1,0), k_(1,1), v_(0,0), v_(0,1), v_(1,0), v_(1,1)]]
    qs = [(q_(ks, t), [f"m{ks}", f"w{ks}{t}"]) for ks in range(2, 8) for t in range(2)]
    ks_ = [(k_(ks, t), []) for t in range(2) for ks in range(2, 8)]
    vs = [(v_(ks, t), []) for ks in range(2, 8) for t in range(2)]
    def KXr(kt, j): return KX + 8*j + 4*kt
    sc_ = []
    for j in range(4):
        c0 = "0" if j == 0 else None
        sc_ += [(mf(SX, KXr(0, j), QO + 4*j, c0), [f"q{j}"]), (mf(SX + 4, KXr(1, j), QO + 4*j, c0), []), (mf(SM, KOr[j], QO + 4*j, c0), [f"k{j}"])]
    g = {}
    mw = mem_writes(); mr = [(f"m{ks}", x) for ks, x in zip(range(2, 8), mem_reads())]
    g[0] = [mw[0]]; g[1] = [mw[1], f"s_cbranch_vccnz L_gr{tg}"]
    AB = opt.get("ab", 5)
    g[AB] = ["s_waitcnt lgkmcnt(0)", "s_barrier"] + STI("pastA") + mr[:1]
    w5 = [(f"w5{i_>>1}", x) for i_, x in enumerate(wq_stage([2]))]; w7 = [(f"w7{i_>>1}", x) for i_, x in enumerate(wq_stage([3]))]
    spread(g, AB + 1, mr[1:] + w5)
    spread(g, 15, w7)
    kx = [f"ds_read_b128 v[{KXr(kt,j)}:{KXr(kt,j)+3}], v{KXA} offset:{L_KV+4096*kt+1024*j}" for j in range(4) for kt in range(2)]
    spread(g, 22, kx[:2]); spread(g, 24, kx[2:])
    g[23] = STI("qdone") + g[23]
    f = fin(QA, QA+1, QA+3)
    g[24] = ["s_nop 0"] + g[24]; g[25] = ["s_nop 0"] + g[25]
    for gi, x in zip(range(26, 32), [f[0], f[2], f[1], f[3], f[4], f[5]]): g.setdefault(gi, []).append(x)
    g[32] = [f"ds_write2_b32 v{QW}, v{QA+1}, v{QA+3} offset0:0 offset1:4"]
    fk = fin(KA, KA+1, KA+3)
    g[33] = [fk[0]]; g[34] = [fk[2]]; g[35] = ["s_nop 1"] + STI("kdone")
    g[36] = ["s_nop 2"]
    g[37] = ["s_nop 0", fk[1], fk[3], fk[4], fk[5]]
    g[38] = [f"ds_write2_b32 v{QW}, v{KA+1}, v{KA+3} offset0:128 offset1:132"] + STI("kw")
    qo = [(f"q{j}", f"ds_read_b128 v[{QO+4*j}:{QO+4*j+3}], v{QR} offset:{1024*j}") for j in range(4)]
    ko = [(f"k{j}", f"ds_read_b128 v[{KOr[j]}:{KOr[j]+3}], v{KR} offset:{1024*j}") for j in range(4)]
    vx = [("vx", f"ds_read_b128 v[{VX+4*t}:{VX+4*t+3}], v{TA} offset:{L_KV+8192+1024*t}") for t in range(2)]
    kd = kv_dma(True, True)
    place = dict(e=6, k=[8, 9, 12, 14, 15, 18], p=21, r1="D", r2="E", r3="D"); place.update(opt.get("place", {}))
    side = dict(e=ex_store(), p=f"buffer_load_dword v{PG}, off, {srd(WS)}, s{sPGA} sc1",
                r1=f"buffer_store_dwordx4 v[{NEG}:{NEG+3}], v{G0}, {srd(WS)}, s{sPr} offen{sc}",
                r2=f"buffer_store_dwordx4 v[{NEG}:{NEG+3}], v{G0}, {srd(WS)}, s{sPr} offen offset:1024{sc}",
                r3=f"buffer_store_dword v{NEG}, v{MST}, {srd(WS)}, s{sMr} offen{sc}")
    def ins(gi, x):
        it = g.setdefault(gi, [])
        tx = lambda y: y[1] if isinstance(y, tuple) else y
        pos = 0 if x.startswith("s_") else next((k_i for k_i, y in enumerate(it) if tx(y).startswith("v_")), len(it))
        it.insert(pos, x)
    nside = 0
    for k in "ep":
        if k not in sk: ins(place[k], side[k]); nside += 1
    if "d" not in sk:
        for x, gi in zip(kd, place["k"]): ins(gi, x)
        nside += 4
    if opt.get("dlat"):
        g[place["k"][0]] = STI("d0") + g[place["k"][0]]
        g[33] = ["s_waitcnt vmcnt(0)"] + STI("d1") + g[33]
    g[39] = [f"v_add_u32 v{TA}, s{sW2K}, v{KXA}"]
    g[40] = [f"s_waitcnt vmcnt({nside})", f"v_xor_b32 v{KXA}, 0x4000, v{KXA}"]
    CB = opt.get("cb", 42)
    g[CB] = ["s_waitcnt lgkmcnt(0)", "s_barrier"] + STI("pastC")
    ws_ = [(f"o{i_>>1}", x) for i_, x in enumerate(wo_stage(range(6)))]
    rd = [qo[0], ko[0], qo[1], ko[1], qo[2], ko[2], qo[3], ko[3], vx[0], vx[1]] + ws_[:6]
    at = [CB + i_ for i_ in range(10)] + [53, 54, 56, 57, 59, 59]
    for x, gi in zip(rd, at): g.setdefault(gi, []).append(x)
    vf = vfin()
    vl = vf + [f"v_mov_b32 v{ON}, 0x3f803f80", f"v_mov_b32 v{ON+1}, 0x3f803f80", f"v_mov_b64 v[{ON+2}:{ON+3}], v[{ON}:{ON+1}]", f"v_mov_b32 v{PMA+1}, 0", f"v_mov_b32 v{PMB}, 0"]
    for x, gi in zip(vl, [50, 51, 52, 52, 53, 54, 55, 55, 56, 57, 58]): g.setdefault(gi, []).append(x)
    g[59] = STI("sdone") + g[59]
    sched2(T, own + qs + ks_ + vs + sc_, g, "main")
    s = SX
    A(f"""
    v_max3_f32 v{TA}, v{s}, v{s+1}, v{s+2}
    v_max3_f32 v{TA}, v{TA}, v{s+3}, v{s+4}
    v_max3_f32 v{TB}, v{s+5}, v{s+6}, v{s+7}
    v_max_f32 v{TA}, v{TA}, v{TB}
    v_max3_f32 v{TA}, v{TA}, v{SM}, v{SM+1}
    v_mov_b32 v{TB}, v{TA}
    v_permlane16_swap_b32 v{TA}, v{TB}
    v_max_f32 v{TA}, v{TA}, v{TB}
    v_mov_b32 v{TB}, v{TA}
    v_permlane32_swap_b32 v{TA}, v{TB}
    v_max_f32 v{TA}, v{TA}, v{TB}
    v_mul_f32 v{TA}, s{sNC}, v{TA}
    """)
    ST("max")
    A(f"v_pk_fma_f32 v[{SM}:{SM+1}], v[{SM}:{SM+1}], s[{sCC}:{sCC+1}], v[{TA}:{TB}] op_sel_hi:[1,1,0]")
    for i in range(0, 8, 2): A(f"v_pk_fma_f32 v[{s+i}:{s+i+1}], v[{s+i}:{s+i+1}], s[{sCC}:{sCC+1}], v[{TA}:{TB}] op_sel_hi:[1,1,0]")
    for i in range(2): A(f"v_exp_f32 v{SM+i}, v{SM+i}")
    for i in range(2): A(f"v_exp_f32 v{s+i}, v{s+i}")
    A(f"v_cvt_pk_bf16_f32 v{PMA}, v{SM}, v{SM+1}\nv_cvt_pk_bf16_f32 v{PMB+1}, v{SM}, v{SM+1}")
    ex = [f"v_exp_f32 v{s+i}, v{s+i}" for i in range(8)]
    cv = [f"v_cvt_pk_bf16_f32 v{PX+i}, v{s+2*i}, v{s+2*i+1}" for i in range(4)]
    def mf16c(acc, a, b): return f"v_mfma_f32_16x16x16_bf16 {R(acc,4)}, {R(a,2)}, {R(b,2)}, 0"
    A(ex[2]); A(ex[3])
    A(mf16c(LX, ON, PMA)); A(ex[4]); A(cv[0])
    A(mf16c(OX, VM, PMA)); A(ex[5]); A(cv[1])
    A(mf16c(OX + 4, VM, PMB)); A(ex[6]); A(ex[7]); A(cv[2]); A(cv[3])
    ST("exp")
    T.wait(["vx"])
    A(mf(LX, ON, PX)); T.emit(ws_[6]); A(f"v_mov_b64 v[{NEG}:{NEG+1}], -1")
    A(mf(OX, VX, PX)); T.emit(ws_[7]); A(f"v_mov_b64 v[{NEG+2}:{NEG+3}], -1")
    A(mf(OX + 4, VX + 4, PX)); A(f"v_mov_b64 v[{ZZ}:{ZZ+1}], 0")
    ST("pvm")
    A(f"v_rcp_f32 v{TA}, v{LX}")
    for i in range(0, 8, 2): A(f"v_pk_mul_f32 v[{OX+i}:{OX+i+1}], v[{OX+i}:{OX+i+1}], v[{TA}:{TB}] op_sel_hi:[1,0]")
    for i in range(4): A(f"v_cvt_pk_bf16_f32 v{SM+i}, v{OX+i}, v{OX+4+i}")
    A(f"ds_write_b128 v{OW}, v[{SM}:{SM+3}]")
    A(f"v_mfma_f32_32x32x8_bf16 v[{MEM}:{MEM+15}], v[{ZZ}:{ZZ+1}], v[{ZZ}:{ZZ+1}], 0")
    ST("preD")
    for k, pl in place.items():
        if pl == "D": A(side[k])
    A(f"v_mfma_f32_32x32x8_bf16 v[{MEM+16}:{MEM+31}], v[{ZZ}:{ZZ+1}], v[{ZZ}:{ZZ+1}], 0")
    A("s_waitcnt lgkmcnt(0)\ns_barrier")
    ST("pastD")
    A(f"ds_read_b128 v[{OO}:{OO+3}], v{LB} offset:{L_OB}\nds_read_b128 v[{OO+4}:{OO+7}], v{LB} offset:{L_OB+1024}")
    for k, pl in place.items():
        if pl == "E": A(side[k])
    A(f"s_add_u32 s{sPr}, s{sPc}, s{sH13}")
    A("s_waitcnt lgkmcnt(1)")
    ST("wo0")
    def wo(tau, k2): return sm(MEM + 4*tau, OO + 4*k2, WO_res(tau, k2) if tau < 5 else WOS[2*(tau-5)+k2])
    def wfin(tau):
        a = MEM + 4*tau; d = MEM + 8*(tau >> 1) + (tau & 1)
        return [f"v_add_f32 v{a}, v{a}, v{a+1}", f"v_add_f32 v{a+2}, v{a+2}, v{a+3}", f"v_cvt_pk_bf16_f32 v{d}, v{a}, v{a+2}"]
    def sst(k): return f"buffer_store_dwordx2 v[{MEM+8*k}:{MEM+8*k+1}], v{SCAT}, {srd(WS)}, s{[sPc, sP1, sP2, sP3][k]} offen{sc}"
    ws_ = [x[1] for x in ws_]
    g = {0: ["s_waitcnt lgkmcnt(0)"], 1: ["s_nop 0", ws_[8]], 2: ["s_nop 0", ws_[9]], 3: ["s_nop 0", ws_[10]]}
    for tau in range(6):
        w = wfin(tau); g[2*tau+4] = ["s_nop 0", w[0]]; g[2*tau+5] = ["s_nop 0"] + w[1:]
    g[4][0] = ws_[11]
    g[8][0] = sst(0); g[12][0] = sst(1); g[13][0] = "s_waitcnt lgkmcnt(0)"
    sched(A, [wo(tau, k2) for tau in range(8) for k2 in range(2)], g)
    A(sst(2))
    for x in wfin(6) + wfin(7): A(x)
    A(sst(3))
    ST("scat")
    SEL, RA, RP = MEM + 4, MEM + 20, MEM + 8
    book = f"""s_mov_b32 s{sMr}, s{sMc}
    s_mov_b32 s{sMc}, s{sMn}
    s_add_u32 s{sMn}, s{sMn}, 8192
    s_and_b32 s{sMn}, s{sMn}, 0x7fff
    s_add_u32 s{sPc}, s{sPc}, 0x40000
    s_and_b32 s{sPc}, s{sPc}, 0xfffff
    s_or_b32 s{sPc}, s{sPc}, {WS_P}
    s_add_u32 s{sP1}, s{sPc}, 0x10000
    s_add_u32 s{sP2}, s{sPc}, 0x20000
    s_add_u32 s{sP3}, s{sPc}, 0x30000
    s_add_u32 s{sKV}, s{sKV}, {32*16384}
    s_add_u32 s{sVV}, s{sKV}, 8192
    s_xor_b32 s{sKXD}, s{sKXD}, 0x4000
    s_xor_b32 s{sVXD}, s{sVXD}, 0x4000
    s_add_u32 s{sEX}, s{sEX}, 8192
    s_add_u32 s{sT0}, s{sS}, 3
    s_lshr_b32 s{sKVT}, s{sT0}, 2
    s_min_u32 s{sKVT}, s{sKVT}, 15
    s_mov_b32 s{sPGO}, s{sPGA}
    s_add_u32 s{sS}, s{sS}, 1
    s_add_u32 s{sT0}, s{sS}, 3
    s_and_b32 s{sT0}, s{sT0}, 3
    s_lshl_b32 s{sT0}, s{sT0}, 2
    s_add_u32 s{sPGA}, s{sT0}, s{sPRGKV}""".split("\n")
    if opt.get("trace"): A(f"s_mov_b32 s79, s{sTMO}")
    work = [(11, f"ds_read_b128 v[{SEL}:{SEL+3}], v{LB} offset:{L_SEL}")] + [(11, x) for x in wq_stage([0, 1])] + [(4, x) for x in book]
    nsp = opt.get("sp", 0)
    if nsp:
        work += [(4, "s_waitcnt lgkmcnt(0)"), (4, f"s_add_u32 s{sT0}, s{sVV}, s{sW2K}")]
        work += [(4, f"s_buffer_load_dword s89, {srd(WS)}, s{sT0} offset:{128*i_:#x}") for i_ in range(nsp)]
    polls(RP, sPr, rp, work, (opt.get("rw", 0), [f"v_mov_b32 v{TA}, 0"] * opt.get("rwarm", 0)))
    A(f"L_rw{tg}:")
    A(f"s_waitcnt vmcnt({2*(len(rp)-1)})" + ("" if nsp else " lgkmcnt(0)"))
    ST("rret")
    for x in chk8(RP, TA, TB): A(x)
    A(mf(RA, SEL, RP, "0")); A(mf(RA, SEL, RP + 4))
    A(f"s_cbranch_vccnz L_rr{tg}")
    A(f"v_readfirstlane_b32 s{sT1}, v{PG}")
    A(f"""
    v_add_f32_dpp v{RA}, v{RA}, v{RA} row_shr:4 row_mask:0xf bank_mask:0xf
    v_add_f32_dpp v{RA+1}, v{RA+1}, v{RA+1} row_shr:4 row_mask:0xf bank_mask:0xf
    v_add_f32_dpp v{RA}, v{RA}, v{RA} row_shr:8 row_mask:0xf bank_mask:0xf
    v_add_f32_dpp v{RA+1}, v{RA+1}, v{RA+1} row_shr:8 row_mask:0xf bank_mask:0xf
    v_cvt_pk_bf16_f32 v{VM}, v{RA}, v{RA+1}
    buffer_store_dword v{VM}, v{MST}, {srd(WS)}, s{sMc} offen{sc}
    """)
    ST("red")
    if not opt.get("no_kv_wait"):
        A(f"""
        s_cmp_gt_u32 s{sT1}, s{sKVT}
        s_cbranch_scc0 L_kvw{tg}
        L_kvok{tg}:
        """)
    ST("end")
    if opt.get("trace"):
        A("s_waitcnt lgkmcnt(0)")
        for i in range(len(ST.names)): A(f"v_writelane_b32 v{TA}, s{STAMP_REGS[i]}, {i}")
        A(f"v_writelane_b32 v{TA}, s{sTMO}, 31")
        A(f"v_writelane_b32 v{TA}, s79, 30")
        if not ST.probe or len(ST.probe) > 2: open("stamps.txt", "w").write(" ".join(ST.names))
        A(f"""s_lshl_b32 s{sT0}, s{sS}, 14
        s_lshl_b32 s{sT1}, s{sH}, 9
        s_add_u32 s{sT0}, s{sT0}, s{sT1}
        s_lshl_b32 s{sT1}, s{sW}, 7
        s_add_u32 s{sT0}, s{sT0}, s{sT1}
        s_add_u32 s{sT0}, s{sT0}, {WS_TRC - 16384}
        v_lshrrev_b32 v{TB}, 2, v{LB}
        s_mov_b32 exec_hi, 0
        buffer_store_dword v{TA}, v{TB}, {srd(WS)}, s{sT0} offen
        s_mov_b64 exec, -1""")
    A(f"s_cmp_lt_u32 s{sS}, 63\ns_cbranch_scc1 L_step_{'slow' if slow else 'fast'}\ns_branch L_last")
    A(f"L_gr{tg}:")
    retry(A, MEM, sMc, f"L_gw{tg}", post=[f"v_mov_b64 v[{r}:{r+1}], 0" for r in range(QA, QA+8, 2)])
    A(f"L_rr{tg}:")
    retry(A, RP, sPr, f"L_rw{tg}")
    if not opt.get("no_kv_wait"):
        A(f"""
        L_kvw{tg}:
        buffer_load_dword v{PG}, off, {srd(WS)}, s{sPGO} sc1
        s_sub_u32 s{sTMO}, s{sTMO}, 1
        s_cmp_eq_u32 s{sTMO}, 0
        s_cbranch_scc1 L_fail
        s_waitcnt vmcnt(0)
        v_readfirstlane_b32 s{sT1}, v{PG}
        s_cmp_gt_u32 s{sT1}, s{sKVT}
        s_cbranch_scc0 L_kvw{tg}
        s_branch L_kvok{tg}
        """)

def chain_last(A, opt):
    A("L_last:")
    A(ex_store())
    tl(A, opt, 7, TA)
    dtl(A, opt, 12, TA)
    if opt.get("tot"):
        A(f"""
        s_memtime s[100:101]
        s_memrealtime s[92:93]
        s_waitcnt lgkmcnt(0)
        s_sub_u32 s100, s100, s98
        s_sub_u32 s92, s92, s94
        v_mov_b32 v{TA}, s100
        v_mov_b32 v{TB}, s92
        s_mov_b64 exec, 1
        buffer_store_dword v{TA}, off, {srd(DBG)}, 0 offset:56
        buffer_store_dword v{TB}, off, {srd(DBG)}, 0 offset:52
        """)
    enc = opt.get("enc")
    if enc:
        A("s_memtime s[86:87]\ns_memrealtime s[92:93]\ns_waitcnt lgkmcnt(0)")
        if enc == 1: A("s_sub_u32 s86, s94, s100")
        if enc == 2: A("s_sub_u32 s86, s92, s94\ns_lshr_b32 s86, s86, 1")
        if enc == 3: A("s_sub_u32 s86, s86, s98\ns_lshr_b32 s86, s86, 6")
        if enc == 4: A("s_mov_b32 s86, 0")
        A("""
        s_add_u32 s86, s86, 1000
        s_add_u32 s86, s86, s92
        L_enc:
        s_memrealtime s[92:93]
        s_waitcnt lgkmcnt(0)
        s_sub_u32 s87, s92, s86
        s_cmp_lt_i32 s87, 0
        s_cbranch_scc1 L_enc
        """)
    A("s_branch L_end")

def chain(A, opt):
    chain_init(A, opt)
    chain_step(A, opt, False)
    chain_step(A, opt, True)
    chain_last(A, opt)
```

```python
from asmlib import *
from layout import *
KNAME = "gated_mix__memory_aug_recurrent_mem_tr__swiglu_ffn__prompt_kernel"
sW = 3
WS, DBG, XS, WQ, WK, WV, WO, M0S, WG, WU, WD, GW, OUT = (4, 8, 12, 16, 20, 24, 28, 32, 36, 40, 44, 48, 52)
sXCC, sIDX, sGRP, sTMO = 56, 57, 58, 59
def srd(b): return f"s[{b}:{b+3}]"
TMO = 4000000

def weave(A, mf, oth, per=2, lead=0):
    oth = list(oth)
    for _ in range(lead):
        if oth: A(oth.pop(0))
    for m in mf:
        A(m)
        for _ in range(per):
            if oth: A(oth.pop(0))
    for o in oth: A(o)

def prologue(A, opt):
    if opt.get("tl") or opt.get("dtl") or opt.get("enc"): A("s_memrealtime s[100:101]")
    A(f"""
    s_cmp_ge_u32 s2, 256
    s_cbranch_scc1 L_end
    s_load_dwordx2 s[{WS}:{WS+1}], s[0:1], 112
    s_load_dwordx2 s[{DBG}:{DBG+1}], s[0:1], 104
    s_load_dwordx2 s[{XS}:{XS+1}], s[0:1], 0
    s_load_dwordx2 s[{M0S}:{M0S+1}], s[0:1], 8
    s_load_dwordx2 s[{WQ}:{WQ+1}], s[0:1], 16
    s_load_dwordx2 s[{WK}:{WK+1}], s[0:1], 24
    s_load_dwordx2 s[{WV}:{WV+1}], s[0:1], 32
    s_load_dwordx2 s[{WO}:{WO+1}], s[0:1], 40
    s_load_dwordx2 s[{WG}:{WG+1}], s[0:1], 64
    s_load_dwordx2 s[{WU}:{WU+1}], s[0:1], 72
    s_load_dwordx2 s[{WD}:{WD+1}], s[0:1], 80
    s_load_dwordx2 s[{GW}:{GW+1}], s[0:1], 88
    s_load_dwordx2 s[{OUT}:{OUT+1}], s[0:1], 96
    s_getreg_b32 s{sXCC}, hwreg(HW_REG_XCC_ID)
    s_and_b32 s{sXCC}, s{sXCC}, 7
    v_lshrrev_b32 v1, 6, v0
    v_readfirstlane_b32 s{sW}, v1
    """)
    if opt.get("fake_xcc"):
        A(f"s_mul_i32 s{sXCC}, s2, 37\ns_lshr_b32 s{sXCC}, s{sXCC}, 3\ns_and_b32 s{sXCC}, s{sXCC}, 7\ns_and_b32 s60, s2, 3\ns_cmp_eq_u32 s60, 1\ns_cselect_b32 s{sXCC}, 5, s{sXCC}")
    sizes = {WS: 0x10000000, DBG: 256, XS: 2097152, M0S: 8192, WQ: 4194304, WK: 4194304, WV: 4194304, WO: 4194304,
             WG: 512*1376*2, WU: 512*1376*2, WD: 512*1376*2, GW: 1024, OUT: 2097152}
    for b, n in sizes.items():
        A(f"s_mov_b32 s{b+2}, {n}\ns_mov_b32 s{b+3}, 0x20000")
    A(f"""
    s_waitcnt lgkmcnt(0)
    s_cmp_lg_u32 s{sW}, 0
    s_cbranch_scc1 L_noticket
    s_lshl_b32 s60, s{sXCC}, 2
    v_mov_b32 v4, 1
    s_mov_b64 exec, 1
    buffer_atomic_add v4, off, {srd(DBG)}, s60 sc0
    s_mov_b64 exec, -1
    L_noticket:
    s_cmp_lg_u32 s2, 0
    s_cbranch_scc1 L_nozero
    v_lshlrev_b32 v2, 4, v0
    v_mov_b32 v8, 0
    v_mov_b32 v9, 0
    v_mov_b32 v10, 0
    v_mov_b32 v11, 0
    s_mov_b32 s60, {WS_PRG}
    s_mov_b32 s61, {WS_PRG + 0x1000}
    s_mov_b32 s62, {WS_PRG + 0x2000}
    s_mov_b32 s63, {WS_PRG + 0x3000}
    buffer_store_dwordx4 v[8:11], v2, {srd(WS)}, s60 offen sc1
    buffer_store_dwordx4 v[8:11], v2, {srd(WS)}, s61 offen sc1
    buffer_store_dwordx4 v[8:11], v2, {srd(WS)}, s62 offen sc1
    buffer_store_dwordx4 v[8:11], v2, {srd(WS)}, s63 offen sc1
    L_nozero:
    s_waitcnt vmcnt(0)
    s_cmp_lg_u32 s{sW}, 0
    s_cbranch_scc1 L_noticket2
    v_mov_b32 v5, 0
    s_mov_b64 exec, 1
    ds_write_b32 v5, v4
    s_mov_b64 exec, -1
    s_waitcnt lgkmcnt(0)
    L_noticket2:
    s_barrier
    v_mov_b32 v5, 0
    ds_read_b32 v4, v5
    s_cmp_lg_u32 s2, 0
    s_cbranch_scc1 L_nozero2
    v_mov_b32 v6, 1
    s_mov_b64 exec, 1
    buffer_store_dword v6, off, {srd(DBG)}, 0 offset:{DBG_INIT} sc1
    s_mov_b64 exec, -1
    L_nozero2:
    s_waitcnt lgkmcnt(0)
    v_readfirstlane_b32 s{sIDX}, v4
    s_mov_b32 s{sGRP}, s{sXCC}
    s_barrier
    v_and_b32 v0, 63, v0
    s_cmp_lt_u32 s{sIDX}, 32
    s_cbranch_scc0 L_overflow
    L_role:
    """)
    tl(A, opt, 1, 4)
    if opt.get('tl'):
        A(f"v_mov_b32 v4, s100\ns_lshl_b32 s96, s{sGRP}, 5\ns_add_u32 s96, s96, s{sIDX}\ns_lshl_b32 s96, s96, 6\ns_add_u32 s96, s96, {WS_TRC + 2*MB}\nbuffer_store_dword v4, off, {srd(WS)}, s96\ns_waitcnt vmcnt(0)")

def overflow(A, opt):
    A(f"""
    L_overflow:
    s_mov_b32 s{sTMO}, {TMO}
    v_lshlrev_b32 v2, 2, v0
    L_ovf_wait:
    buffer_load_dword v3, v2, {srd(DBG)}, 0 offen sc1
    s_sub_u32 s{sTMO}, s{sTMO}, 1
    s_cmp_eq_u32 s{sTMO}, 0
    s_cbranch_scc1 L_fail
    s_waitcnt vmcnt(0)
    s_mov_b32 s60, 0
    """)
    for x in range(8):
        A(f"v_readlane_b32 s{62+x}, v3, {x}\ns_add_u32 s60, s60, s{62+x}")
    A(f"""
    s_cmp_lt_u32 s60, 256
    s_cbranch_scc1 L_ovf_wait
    s_cmp_lg_u32 s{sW}, 0
    s_cbranch_scc1 L_ovf_t
    v_mov_b32 v4, 1
    v_mov_b32 v5, 0
    s_mov_b64 exec, 1
    buffer_atomic_add v4, off, {srd(DBG)}, 0 offset:{DBG_OVF} sc0
    s_waitcnt vmcnt(0)
    ds_write_b32 v5, v4
    s_mov_b64 exec, -1
    s_waitcnt lgkmcnt(0)
    L_ovf_t:
    s_barrier
    v_mov_b32 v5, 0
    ds_read_b32 v4, v5
    s_waitcnt lgkmcnt(0)
    v_readfirstlane_b32 s61, v4
    s_barrier
    """)
    for x in range(8):
        A(f"""
        s_min_u32 s70, s{62+x}, 32
        s_sub_u32 s71, 32, s70
        s_mov_b32 s{sGRP}, {x}
        s_add_u32 s{sIDX}, s70, s61
        s_cmp_lt_u32 s61, s71
        s_cbranch_scc1 L_role
        s_sub_u32 s61, s61, s71
        """)
    A("s_branch L_end")

def wait_init(A, tag, vt=3):
    A(f"""
    s_mov_b32 s{sTMO}, {TMO}
    L_wi_{tag}:
    buffer_load_dword v{vt}, off, {srd(DBG)}, 0 offset:{DBG_INIT} sc1
    s_sub_u32 s{sTMO}, s{sTMO}, 1
    s_cmp_eq_u32 s{sTMO}, 0
    s_cbranch_scc1 L_fail
    s_waitcnt vmcnt(0)
    v_readfirstlane_b32 s85, v{vt}
    s_cmp_eq_u32 s85, 0
    s_cbranch_scc1 L_wi_{tag}
    """)

def epilogue(A):
    A(f"""
    L_fail:
    s_waitcnt vmcnt(0) lgkmcnt(0)
    s_mov_b64 exec, -1
    s_lshl_b32 s60, s{sGRP}, 8
    s_add_u32 s60, s60, s{sIDX}
    s_add_u32 s60, s60, 0x10000
    v_mov_b32 v4, s60
    s_mov_b64 exec, 1
    buffer_store_dword v4, off, {srd(DBG)}, 0 offset:{DBG_ERR} sc1
    L_end:
    s_endpgm
    """)

def tl(A, opt, slot, vt, cond=None):
    if not opt.get("tl"): return
    lab = A.newlabel("L_tl")
    if cond: A(f"s_lshr_b32 s96, s{cond[0]}, 1\ns_cmp_lg_u32 s96, {cond[1]}\ns_cbranch_scc1 {lab}")
    A(f"""
    s_cmp_lg_u32 s{sW}, 0
    s_cbranch_scc1 {lab}
    s_memrealtime s[96:97]
    s_waitcnt lgkmcnt(0)
    v_mov_b32 v{vt}, s96
    s_lshl_b32 s96, s{sGRP}, 5
    s_add_u32 s96, s96, s{sIDX}
    s_lshl_b32 s96, s96, 6
    s_add_u32 s96, s96, {WS_TRC + 2*MB + 4*slot}
    s_mov_b64 exec, 1
    buffer_store_dword v{vt}, off, {srd(WS)}, s96
    s_mov_b64 exec, -1
    {lab}:
    """)

def tlseq(A, opt, vt, sidx, shift, area):
    if not opt.get("tl"): return
    lab = A.newlabel("L_ts")
    A(f"""
    s_cmp_lg_u32 s{sW}, 0
    s_cbranch_scc1 {lab}
    s_memrealtime s[96:97]
    s_waitcnt lgkmcnt(0)
    v_mov_b32 v{vt}, s96
    s_lshl_b32 s96, s{sGRP}, 5
    s_add_u32 s96, s96, s{sIDX}
    s_lshl_b32 s96, s96, 8
    s_lshr_b32 s97, s{sidx}, {shift}
    s_lshl_b32 s97, s97, 2
    s_add_u32 s96, s96, s97
    s_add_u32 s96, s96, {WS_TRC + (4+area)*MB}
    s_mov_b64 exec, 1
    buffer_store_dword v{vt}, off, {srd(WS)}, s96
    s_mov_b64 exec, -1
    {lab}:
    """)

def dtl(A, opt, word, vt):
    if not opt.get("dtl"): return
    A(f"""
    s_memrealtime s[96:97]
    s_waitcnt lgkmcnt(0)
    s_sub_u32 s96, s96, s100
    v_mov_b32 v{vt}, s96
    s_mov_b64 exec, 1
    buffer_atomic_umax v{vt}, off, {srd(DBG)}, 0 offset:{4*word}
    s_mov_b64 exec, -1
    """)
```

```python
from common import *
L_KV, L_MEM, L_QB, L_OB, L_SEL, L_H0, L_H1 = 0x0, 0x8000, 0xA000, 0xB200, 0xBA00, 0x8000, 0x18000
L_WO, L_WQ = 0xC000, 0x18000
LB, IDX, SCAT, MST, QW, QR, KR, OW, TRQ, TRO, G0, MA1, MA2, MA3, VM, VM1 = range(16)
MEM = 16
QA, KA, VA, SM = 48, 56, 64, 72
TA, TB, PG, KXA = 76, 77, 78, 79
T0, T1 = TA, TB
BIG = 80
SX, OX, KX = 48, 56, BIG
QO, VX = MEM + 8, MEM + 24
KOr = [56, 60, MEM, MEM + 4]
ON, PMA, PMB = 64, 68, 70
LX, PX, ZZ = MEM, MEM + 8, 48
NEG, OO = 52, 64
WOS = [80, 88, 96, 104, 48, 56]
def WQ_res(p, t): return 112 + 8 * (2 * p + t)
def WQ_stg(p, t): return BIG + 16 * (p & 1) + 8 * t
def WO_res(tau, k2): return 176 + 8 * (2 * tau + k2)
def WKf(ks, t): return 256 + 8 * (2 * ks + t)
def WVf(ks, t): return 384 + 8 * (2 * ks + t)
sH, sS, sMc, sMn, sMr, sPc, sPr, sKV, sEX, sC, sNC, sPRGKV, sPRGKM, sT0, sT1, sW1K, sW2K, sOM = 60, 61, 62, 63, 64, 65, 66, 67, 68, 69, 70, 71, 72, 73, 74, 75, 76, 78
sP1, sVV, sKXD, sVXD, sP2, sPGA, sKVT, sPGO, sH13, sP3 = 80, 81, 82, 83, 77, 84, 78, 72, 75, 88
QOFF = [0, 256, 2048, 2304]
QOFW = [0, 512, 8192, 8704]
sCC = 90

def sm(acc, a, b): return f"v_smfmac_f32_16x16x64_bf16 {R(acc,4)}, {R(a,4)}, {R(b,8)}, v{IDX}"
def mf(acc, a, b, c=None): return f"v_mfma_f32_16x16x32_bf16 {R(acc,4)}, {R(a,4)}, {R(b,4)}, {R(acc,4) if c is None else c}"
def mf16(acc, a, b): return f"v_mfma_f32_16x16x16_bf16 {R(acc,4)}, {R(a,2)}, {R(b,2)}, {R(acc,4)}"
def q_(ks, t): return sm(QA + 4*t, MEM + 4*ks, WQ_res(ks >> 1, t) if ks % 2 == 0 else WQ_stg(ks >> 1, t))
def k_(ks, t): return sm(KA + 4*t, MEM + 4*ks, WKf(ks, t))
def v_(ks, t): return sm(VA + 4*t, MEM + 4*ks, WVf(ks, t))

def trq_reads(dst, base_imm, treg, add10000=False):
    out = []
    for p in range(4):
        if p == 0: out.append(f"v_mov_b32 v{treg}, v{TRQ}")
        else:
            out.append(f"v_add_u32 v{treg}, {p*16384}, v{TRQ}")
            out.append(f"v_and_b32 v{treg}, 0xffff, v{treg}")
        if add10000: out.append(f"v_add_u32 v{treg}, 0x10000, v{treg}")
        for t in range(2):
            if t: out.append(f"v_xor_b32 v{treg}, 32, v{treg}")
            for qd in range(4):
                out.append(f"ds_read_b64_tr_b16 {R(dst(p,t)+2*qd,2)}, v{treg} offset:{base_imm+QOFW[qd]}")
    return out
def tro_reads(dst, tps, treg):
    out = []
    for tp in tps:
        out.append(f"v_xor_b32 v{treg}, {32*tp}, v{TRO}")
        for k2 in range(2):
            for qd in range(4):
                out.append(f"ds_read_b64_tr_b16 {R(dst(tp,k2)+2*qd,2)}, v{treg} offset:{32768*k2+QOFF[qd]}")
    return out

def chain_init(A, opt):
    A(f"""
    L_chain:
    s_mov_b32 s{sH}, s{sIDX}
    v_and_b32 v20, 15, v0               ; n
    v_lshrrev_b32 v21, 4, v0            ; g
    v_and_b32 v22, 3, v0                ; n&3 (cc / c)
    v_bfe_u32 v23, v0, 2, 2             ; n>>2 (u / a)
    s_lshl_b32 s{sH13}, s{sH}, 13
    s_lshl_b32 s{sW2K}, s{sW}, 11
    v_lshrrev_b32 v24, 5, v0
    v_lshlrev_b32 v24, 3, v24
    s_lshl_b32 s{sT0}, s{sW}, 1
    v_add_u32 v24, s{sT0}, v24
    v_xor_b32 v24, v24, v20             ; c16
    s_lshl_b32 s{sT0}, s{sW}, 4
    v_add_u32 v25, s{sT0}, v21          ; row 16w + (l>>4)
    v_lshlrev_b32 v27, 10, v25
    v_lshrrev_b32 v28, 3, v24
    v_lshl_add_u32 v27, v28, 8, v27
    v_and_b32 v28, 7, v24
    v_lshl_add_u32 v27, v28, 4, v27
    s_lshl_b32 s{sT0}, s{sH}, 17
    v_add_u32 v27, s{sT0}, v27
    s_and_b32 s{sC}, s{sW}, 1
    s_lshr_b32 s{sT0}, s{sW}, 1
    s_lshl_b32 s{sT0}, s{sT0}, 7
    s_lshl_b32 s{sT1}, s{sC}, 4
    s_add_u32 s{sT0}, s{sT0}, s{sT1}
    v_add_u32 v25, s{sT0}, v21
    v_and_b32 v24, 1, v21
    v_lshlrev_b32 v24, 1, v24
    s_lshl_b32 s{sT1}, s{sC}, 2
    v_add_u32 v24, s{sT1}, v24
    v_xor_b32 v24, v24, v20
    v_lshlrev_b32 v26, 13, v25
    v_lshl_add_u32 v26, v24, 4, v26
    s_lshl_b32 s{sT0}, s{sH}, 8
    v_add_u32 v26, s{sT0}, v26          ; v26: i even
    v_xor_b32 v34, 128, v26             ; v34: i odd
    s_lshl_b32 s{sT1}, s{sW}, 12
    v_lshrrev_b32 v28, 1, v21
    s_lshl_b32 s{sT0}, s{sW}, 1
    v_add_u32 v28, s{sT0}, v28
    v_lshlrev_b32 v28, 10, v28
    v_and_b32 v29, 1, v21
    v_lshl_add_u32 v28, v29, 1, v28
    v_lshl_add_u32 v28, v22, 2, v28
    s_bfe_u32 s{sT0}, s{sH}, 0x10002
    s_lshl_b32 s{sT0}, s{sT0}, 9
    s_lshr_b32 s{sC}, s{sH}, 3
    s_lshl_b32 s{sC}, s{sC}, 6
    s_add_u32 s{sT0}, s{sT0}, s{sC}
    s_bfe_u32 s{sC}, s{sH}, 0x10001
    s_lshl_b32 s{sC}, s{sC}, 8
    s_add_u32 s{sT0}, s{sT0}, s{sC}
    s_and_b32 s{sC}, s{sH}, 1
    s_lshl_b32 s{sC}, s{sC}, 4
    s_add_u32 s{sT0}, s{sT0}, s{sC}
    buffer_load_ushort v30, v28, {srd(M0S)}, s{sT0} offen
    buffer_load_ushort v31, v28, {srd(M0S)}, s{sT0} offen offset:32
    """)
    groups = [(WK, 0), (WK, 1), (WV, 0), (WV, 1), (WO, 0), (WQ, 0), (WO, 1), (WQ, 1)]
    def dma(gi):
        mat, par = groups[gi]
        hb = L_H0 if gi % 2 == 0 else L_H1
        for sl in range(4):
            for i in range(4):
                so = (256*par + 32*sl + 4*i) * 8192 if mat != WO else (sl >> 1) * 65536 + i * 4096 + 512 * (sl & 1) + 128 * par
                A(f"s_add_u32 m0, s{sT1}, {hb + sl*16384 + i*1024}")
                A(f"s_mov_b32 s{sT0}, {so}")
                A(f"buffer_load_dwordx4 v{27 if mat == WO else 34 if i & 1 else 26}, {srd(mat)}, s{sT0} offen lds")
    dma(0)
    A(f"""
    v_and_b32 v28, 1, v0
    v_mov_b32 v{IDX}, 0x4444
    v_mov_b32 v29, 0xeeee
    v_cmp_eq_u32 vcc, 1, v28
    v_cndmask_b32 v{IDX}, v{IDX}, v29, vcc
    ; SCAT = (2w + b)*8192 + g*2048 + h*64 + (n&7)*8
    v_lshrrev_b32 v28, 3, v20
    v_lshlrev_b32 v{SCAT}, 13, v28
    v_lshl_add_u32 v{SCAT}, v21, 11, v{SCAT}
    v_and_b32 v28, 7, v20
    v_lshl_add_u32 v{SCAT}, v28, 3, v{SCAT}
    s_lshl_b32 s{sT0}, s{sW}, 14
    s_lshl_b32 s{sC}, s{sH}, 6
    s_add_u32 s{sT0}, s{sT0}, s{sC}
    v_add_u32 v{SCAT}, s{sT0}, v{SCAT}
    v_lshlrev_b32 v{MST}, 4, v21
    v_lshl_add_u32 v{MST}, v22, 2, v{MST}
    s_lshl_b32 s{sT0}, s{sH}, 8
    s_lshl_b32 s{sC}, s{sW}, 6
    s_add_u32 s{sT0}, s{sT0}, s{sC}
    v_add_u32 v{MST}, s{sT0}, v{MST}
    v_mov_b32 v29, 0x7fffff00
    v_cmp_le_u32 vcc, 12, v20
    v_cndmask_b32 v{MST}, v29, v{MST}, vcc
    v_and_b32 v28, 1, v23
    v_lshlrev_b32 v28, 6, v28
    v_lshlrev_b32 v29, 5, v21
    v_xor_b32 v28, v28, v29
    v_lshl_add_u32 v{QW}, v23, 7, v28
    v_lshl_add_u32 v{QW}, v22, 2, v{QW}
    s_lshl_b32 s{sT0}, s{sW}, 10
    s_add_u32 s{sT0}, s{sT0}, {L_QB}
    v_add_u32 v{QW}, s{sT0}, v{QW}
    v_and_b32 v28, 1, v21
    v_lshlrev_b32 v28, 2, v28
    v_and_b32 v29, 7, v20
    v_xor_b32 v29, v29, v28
    v_lshlrev_b32 v29, 4, v29
    v_lshl_add_u32 v{QR}, v21, 7, v29
    v_add_u32 v{QR}, {L_QB}, v{QR}
    v_lshl_add_u32 v29, v23, 1, v22
    v_and_b32 v29, 7, v29
    v_xor_b32 v29, v29, v28
    v_lshlrev_b32 v29, 4, v29
    v_lshl_add_u32 v{KR}, v21, 7, v29
    v_add_u32 v{KR}, {L_QB+512}, v{KR}
    v_lshlrev_b32 v{OW}, 8, v21
    v_and_b32 v29, 7, v20
    v_lshl_add_u32 v{OW}, v29, 5, v{OW}
    s_lshr_b32 s{sT0}, s{sW}, 1
    s_lshl_b32 s{sT0}, s{sT0}, 10
    s_and_b32 s{sC}, s{sW}, 1
    s_lshl_b32 s{sC}, s{sC}, 4
    s_add_u32 s{sT0}, s{sT0}, s{sC}
    s_add_u32 s{sT0}, s{sT0}, {L_OB}
    v_add_u32 v{OW}, s{sT0}, v{OW}
    v_lshlrev_b32 v28, 12, v23
    v_lshl_add_u32 v28, v21, 9, v28
    v_and_b32 v29, 1, v22
    v_lshl_add_u32 v28, v29, 3, v28
    v_and_b32 v29, 1, v21
    v_lshlrev_b32 v29, 3, v29
    v_lshl_add_u32 v29, v23, 1, v29     ; f2
    v_lshrrev_b32 v32, 1, v22           ; cc>>1
    s_and_b32 s{sT0}, s{sW}, 1
    s_lshl_b32 s{sT0}, s{sT0}, 3
    v_add_u32 v33, s{sT0}, v32
    v_xor_b32 v33, v33, v29
    v_lshl_add_u32 v{TRO}, v33, 4, v28
    s_lshr_b32 s{sT0}, s{sW}, 1
    s_lshl_b32 s{sT0}, s{sT0}, 14
    s_add_u32 s{sT0}, s{sT0}, {L_H0}
    v_add_u32 v{TRO}, s{sT0}, v{TRO}
    v_and_b32 v28, 1, v23
    v_lshrrev_b32 v29, 1, v23
    v_lshl_add_u32 v33, v28, 4, v29
    v_lshl_add_u32 v33, v21, 2, v33
    v_lshlrev_b32 v33, 8, v33
    v_lshl_add_u32 v29, v28, 1, v29
    v_and_b32 v28, 1, v21
    v_lshl_add_u32 v29, v28, 2, v29
    v_lshlrev_b32 v29, 1, v29
    s_lshl_b32 s{sT0}, s{sW}, 2
    v_add_u32 v28, s{sT0}, v32
    v_xor_b32 v28, v28, v29
    v_lshl_add_u32 v33, v28, 4, v33
    v_and_b32 v28, 1, v22
    v_lshl_add_u32 v{TRQ}, v28, 3, v33
    s_lshl_b32 s{sT0}, s{sW}, 14
    v_add_u32 v{TRQ}, s{sT0}, v{TRQ}
    v_mov_b32 v28, 0x3f80
    v_mov_b32 v29, 0x3f800000
    v_cmp_le_u32 vcc, 8, v20
    v_cndmask_b32 v28, v28, v29, vcc
    v_and_b32 v29, 7, v20
    v_mov_b32 v33, 0
    """)
    for r, val in enumerate([0, 1, 4, 5]):
        A(f"v_cmp_eq_u32 vcc, {val}, v29\nv_cndmask_b32 v{36+r}, v33, v28, vcc")
    A(f"""
    v_lshlrev_b32 v{LB}, 4, v0
    v_add_u32 v{G0}, s{sW2K}, v{LB}
    """)
    for p, r in ((1, MA1), (2, MA2), (3, MA3)):
        A(f"v_add_u32 v{r}, {2048*p}, v{G0}\nv_and_b32 v{r}, 0x1fff, v{r}")
    dma(1)
    A("v_mov_b32 v40, -1\nv_mov_b32 v41, -1\nv_mov_b32 v42, -1\nv_mov_b32 v43, -1")
    A(f"s_lshl_b32 s{sC}, s{sH}, 13")
    for sl in range(2):
        A(f"s_add_u32 s{sT0}, s{sC}, {WS_P + sl*0x40000}")
        A(f"buffer_store_dwordx4 v[40:43], v{G0}, {srd(WS)}, s{sT0} offen sc1")
        A(f"buffer_store_dwordx4 v[40:43], v{G0}, {srd(WS)}, s{sT0} offen offset:1024 sc1")
    for sl in range(1, 4):
        A(f"s_mov_b32 s{sT0}, {WS_M + sl*8192}")
        A(f"buffer_store_dword v40, v{MST}, {srd(WS)}, s{sT0} offen sc1")
    A(f"""
    s_waitcnt vmcnt(39)
    v_lshl_or_b32 v{VM}, v31, 16, v30
    v_min_u32 v{VM}, -2, v{VM}
    s_mov_b32 s{sT0}, {WS_M}
    buffer_store_dword v{VM}, v{MST}, {srd(WS)}, s{sT0} offen sc1
    """)
    dsts = [lambda p, t: WKf(2*p, t), lambda p, t: WKf(2*p+1, t), lambda p, t: WVf(2*p, t), lambda p, t: WVf(2*p+1, t), None, WQ_res]
    for gi in range(6):
        n = {0: 24, 1: 16, 2: 17, 4: 17}.get(gi, 16)
        A(f"s_waitcnt vmcnt({n})")
        if gi == 1:
            A(f"v_mov_b32 v30, 1\ns_mov_b64 exec, 1\nbuffer_atomic_add v30, off, {srd(DBG)}, 0 offset:{DBG_CH}\ns_mov_b64 exec, -1")
        A("s_barrier")
        if opt.get("tl"): A(f"s_memrealtime s[{36+2*gi}:{37+2*gi}]")
        if gi != 4: rd = trq_reads(dsts[gi], L_H0, T0, add10000=(gi % 2 == 1))
        else: rd = tro_reads(WO_res, range(4), T0)
        for r in rd: A(r)
        A("s_waitcnt lgkmcnt(0)\ns_barrier")
        if gi == 3: A(f"buffer_load_dword v35, off, {srd(DBG)}, 0 offset:{DBG_INIT} sc1")
        if gi == 5:
            A(f"v_readfirstlane_b32 s85, v35\ns_cmp_lg_u32 s85, 0\ns_cbranch_scc1 L_c_iok")
            wait_init(A, "c", 35)
            A(f"""
            L_c_iok:
            s_lshl_b32 s{sPRGKV}, s{sH}, 7
            s_add_u32 s{sPRGKV}, s{sPRGKV}, {WS_PRG + PRG_KV}
            v_lshrrev_b32 v33, 2, v{LB}
            buffer_load_dword v35, v33, {srd(DBG)}, 0 offen sc1
            buffer_load_dwordx4 v[20:23], off, {srd(WS)}, s{sPRGKV} sc1
            """)
        dma(gi + 2)
    import struct
    c = (128 ** -0.5) * 1.4426950408889634
    cb = struct.unpack("<I", struct.pack("<f", c))[0]
    A(f"""
    s_mov_b32 s{sC}, {cb:#x}
    s_mov_b32 s{sNC}, {cb | 0x80000000:#x}
    s_mov_b32 s{sCC}, {cb:#x}
    s_mov_b32 s{sCC+1}, {cb:#x}
    s_mov_b32 s{sS}, 0
    s_lshl_b32 s{sKV}, s{sH}, 14
    s_add_u32 s{sKV}, s{sKV}, {WS_KV}
    s_mov_b32 s{sEX}, {WS_EX}
    s_add_u32 s{sKXD}, s{sW2K}, {L_KV}
    s_add_u32 s{sVXD}, s{sW2K}, {L_KV + 8192}
    """)
    A("s_waitcnt vmcnt(16)\ns_barrier")
    TMP = [48, 56, 64, 80, 88, 96, 104, 40]
    for r in tro_reads(lambda tp, k2: WO_res(4, k2) if tp == 0 else TMP[2*(tp-1)+k2], range(4), T0): A(r)
    A(f"s_mul_i32 s{sT0}, s{sW}, 12288\ns_add_u32 s{sT0}, s{sT0}, {L_WO}")
    A("s_waitcnt lgkmcnt(0)\ns_barrier")
    A(f"v_add_u32 v{TRO}, s{sT0}, v{LB}")
    for i in range(12): A(f"ds_write_b128 v{TRO}, v[{TMP[i>>1]+4*(i&1)}:{TMP[i>>1]+4*(i&1)+3}] offset:{1024*i}")
    A(f"ds_write_b128 v{LB}, v[36:39] offset:{L_SEL}")
    A("s_waitcnt lgkmcnt(0)")
    tl(A, opt, 2, T0)
    kvw = not opt.get("no_kv_wait")
    A(f"""
    s_mov_b32 s{sTMO}, {TMO}
    s_branch L_c_chk
    L_c_wait:
    buffer_load_dword v35, v33, {srd(DBG)}, 0 offen sc1
    buffer_load_dwordx4 v[20:23], off, {srd(WS)}, s{sPRGKV} sc1
    s_sub_u32 s{sTMO}, s{sTMO}, 1
    s_cmp_eq_u32 s{sTMO}, 0
    s_cbranch_scc1 L_fail
    s_waitcnt vmcnt(0)
    L_c_chk:
    v_readlane_b32 s{sT0}, v35, {DBG_CH//4}
    v_readlane_b32 s{sT1}, v35, {DBG_C0}
    s_cmp_lt_u32 s{sT0}, {CH_ALL}
    s_cbranch_scc1 L_c_wait
    """)
    if kvw:
        A(f"""
        v_min_u32 v20, v20, v21
        v_min_u32 v20, v20, v22
        v_readfirstlane_b32 s{sT0}, v20
        s_cmp_eq_u32 s{sT0}, 0
        s_cbranch_scc1 L_c_wait
        """)
    tl(A, opt, 3, T0)
    A(f"s_add_u32 s{sVV}, s{sKV}, 8192")
    for x in kv_dma(True, True): A(x)
    A("s_waitcnt vmcnt(4)\ns_barrier")
    for r in trq_reads(lambda p, t: TMP[2*p+t], L_H0, T0, add10000=True): A(r)
    A(f"s_lshl_b32 s{sT0}, s{sW}, 14\ns_add_u32 s{sT0}, s{sT0}, {L_WQ}")
    A("s_waitcnt lgkmcnt(0)\ns_barrier")
    A(f"v_add_u32 v{TRQ}, s{sT0}, v{LB}")
    for i in range(16): A(f"ds_write_b128 v{TRQ}, v[{TMP[i>>1]+4*(i&1)}:{TMP[i>>1]+4*(i&1)+3}] offset:{1024*i}")
    A("s_waitcnt lgkmcnt(0)")
    tl(A, opt, 4, T0)
    if opt.get("tl"):
        for gi in range(6):
            A(f"v_mov_b32 v{T0}, s{36+2*gi}\ns_lshl_b32 s96, s{sIDX}, 6\ns_add_u32 s96, s96, {WS_TRC + 2*MB + 32 + 4*gi}\nbuffer_store_dword v{T0}, off, {srd(WS)}, s96")
    dtl(A, opt, 11, T0)
    if opt.get("trace"):
        A(f"""
        s_memrealtime s[12:13]
        s_waitcnt lgkmcnt(0)
        s_add_u32 s14, s12, 1200
        s_and_b32 s14, s14, 0xfffffc00
        s_mov_b32 s{sTMO}, 100000
        L_cal:
        s_memrealtime s[12:13]
        s_memtime s[16:17]
        s_waitcnt lgkmcnt(0)
        s_sub_u32 s{sTMO}, s{sTMO}, 1
        s_cmp_eq_u32 s{sTMO}, 0
        s_cbranch_scc1 L_caldone
        s_sub_u32 s15, s12, s14
        s_cmp_lt_i32 s15, 0
        s_cbranch_scc1 L_cal
        L_caldone:
        v_mov_b32 v{T0}, s12
        v_mov_b32 v{T1}, s16
        s_lshl_b32 s12, s{sH}, 5
        s_lshl_b32 s13, s{sW}, 3
        s_add_u32 s12, s12, s13
        s_add_u32 s12, s12, {WS_TRC + 3*MB}
        buffer_store_dwordx2 v[{T0}:{T1}], off, {srd(WS)}, s12
        """)
    for r in wq_stage([0, 1]): A(r)
    A(f"""
    v_mov_b32 v{KXA}, v{LB}
    s_mov_b32 s{sMc}, {WS_M}
    s_mov_b32 s{sMn}, {WS_M + 8192}
    s_mov_b32 s{sMr}, {WS_M + 3*8192}
    s_mov_b32 s{sPc}, {WS_P}
    s_mov_b32 s{sP1}, {WS_P + 0x10000}
    s_mov_b32 s{sP2}, {WS_P + 0x20000}
    s_mov_b32 s{sP3}, {WS_P + 0x30000}
    s_add_u32 s{sPr}, s{sH13}, {WS_P + 0x40000}
    s_add_u32 s{sKV}, s{sKV}, {32*16384}
    s_add_u32 s{sVV}, s{sKV}, 8192
    s_xor_b32 s{sKXD}, s{sKXD}, 0x4000
    s_xor_b32 s{sVXD}, s{sVXD}, 0x4000
    s_add_u32 s{sPGA}, s{sPRGKV}, 12
    s_waitcnt lgkmcnt(0)
    s_cmp_lt_u32 s{sT1}, 32
    s_cbranch_scc1 L_step_slow
    """)

def wq_stage(ps):
    return [f"ds_read_b128 {R(WQ_stg(p,t)+4*hf,4)}, v{TRQ} offset:{1024*(4*p+2*t+hf)}" for p in ps for t in range(2) for hf in range(2)]
def wo_stage(idx):
    return [f"ds_read_b128 {R(WOS[i]+4*hf,4)}, v{TRO} offset:{1024*(2*i+hf)}" for i in idx for hf in range(2)]
def zero_accs():
    return [f"v_mov_b64 v[{r}:{r+1}], 0" for r in range(QA, QA+24, 2)]
def sched(A, mf_list, gaps):
    for x in gaps.get(-1, []): A(x)
    for i, m in enumerate(mf_list):
        A(m)
        for x in gaps.get(i, []): A(x)
    assert max(gaps) < len(mf_list)
class LdsTrack:
    def __init__(self, A, verbose=False): self.A, self.q, self.v = A, [], verbose
    def emit(self, x):
        if isinstance(x, tuple): tag, x = x
        else: tag = None
        if not x: return
        if x.startswith("ds_"): self.q.append(tag)
        if x.startswith("s_waitcnt") and "lgkmcnt(0)" in x: self.q = []
        self.A(x)
    def need(self, tags):
        idx = [i for i, t in enumerate(self.q) if t in tags]
        if not idx: return None
        n = len(self.q) - 1 - max(idx)
        self.q = self.q[max(idx)+1:]
        return f"s_waitcnt lgkmcnt({n})"
    def wait(self, tags):
        w = self.need(tags)
        if w: self.A(w)
def gap_cost(m, items):
    slot = 0; smf = "smfmac" in m; prev_valu = False
    for x in items:
        if isinstance(x, tuple): x = x[1]
        if not x: continue
        if x.startswith("s_nop"): slot += int(x.split()[1]) + 1; prev_valu = False; continue
        slot += 1
        if x.startswith(("ds_", "buffer_")):
            slot = max(slot, 2) + (2 if prev_valu else 0); prev_valu = False
            if "store_dwordx4" in x or "write_b128" in x: slot += 3
            if "store_dwordx2" in x: slot += 1
        elif x.startswith("v_"):
            slot = max(slot, 3 if smf else 2) + (1 if x.startswith(("v_exp", "v_rcp")) else 0); prev_valu = True
        else: prev_valu = False
    return max(0, slot - 3) * 4
def sched2(T, mfs, gaps, name=""):
    assert max(gaps) < len(mfs)
    T.wait(mfs[0][1])
    over = []
    for i, (m, _) in enumerate(mfs):
        T.A(m)
        items = list(gaps.get(i, []))
        nxt = mfs[i+1][1] if i + 1 < len(mfs) else []
        late = [x[0] for x in items if isinstance(x, tuple) and x[0] in nxt]
        assert not late, (i, late)
        w = T.need(nxt)
        if w and not any(isinstance(x, str) and "lgkmcnt(0)" in x for x in items): items = [w] + items
        c = gap_cost(m, items)
        if c: over.append((i, c))
        for x in items: T.emit(x)
    if T.v: print("overflow", name, over, sum(c for _, c in over))
def spread(gaps, start, items, per=1, step=1, front=False):
    items = list(items); i = start
    while items:
        chunk, items = items[:per], items[per:]
        gaps[i] = (chunk + gaps.get(i, [])) if front else (gaps.get(i, []) + chunk)
        i += step
    return i

def kv_dma(k, v):
    out = []
    if k:
        out += [f"s_mov_b32 m0, s{sKXD}", f"buffer_load_dwordx4 v{G0}, {srd(WS)}, s{sKV} offen sc1 lds",
                f"buffer_load_dwordx4 v{G0}, {srd(WS)}, s{sKV} offen offset:1024 sc1 lds"]
    if v:
        out += [f"s_mov_b32 m0, s{sVXD}", f"buffer_load_dwordx4 v{G0}, {srd(WS)}, s{sVV} offen sc1 lds",
                f"buffer_load_dwordx4 v{G0}, {srd(WS)}, s{sVV} offen offset:1024 sc1 lds"]
    return out

def ld2(b, so):
    return [f"buffer_load_dwordx4 v[{b}:{b+3}], v{G0}, {srd(WS)}, s{so} offen sc1",
            f"buffer_load_dwordx4 v[{b+4}:{b+7}], v{G0}, {srd(WS)}, s{so} offen offset:1024 sc1"]
def chk8(b, t0, t1):
    return [f"v_max3_u32 v{t0}, v{b}, v{b+1}, v{b+2}", f"v_max3_u32 v{t1}, v{b+3}, v{b+4}, v{b+5}",
            f"v_max3_u32 v{t0}, v{t0}, v{b+6}, v{b+7}", f"v_max_u32 v{t0}, v{t0}, v{t1}", f"v_cmp_eq_u32 vcc, -1, v{t0}"]
def retry(A, b, so, back, post=()):
    A("s_mov_b64 exec, vcc")
    for x in ld2(b, so): A(x)
    A(f"""
    s_mov_b64 exec, -1
    s_sub_u32 s{sTMO}, s{sTMO}, 1
    s_cmp_eq_u32 s{sTMO}, 0
    s_cbranch_scc1 L_fail
    """)
    for x in post: A(x)
    A(f"s_branch {back}")

def fin(acc, d0, d1):
    return [f"v_add_f32 v{acc}, v{acc}, v{acc+1}", f"v_add_f32 v{acc+4}, v{acc+4}, v{acc+5}",
            f"v_add_f32 v{acc+2}, v{acc+2}, v{acc+3}", f"v_add_f32 v{acc+6}, v{acc+6}, v{acc+7}",
            f"v_cvt_pk_bf16_f32 v{d0}, v{acc}, v{acc+4}", f"v_cvt_pk_bf16_f32 v{d1}, v{acc+2}, v{acc+6}"]
def vfin():
    a = VA
    return [f"v_add_f32 v{a}, v{a}, v{a+1}", f"v_add_f32 v{a+2}, v{a+2}, v{a+3}",
            f"v_add_f32 v{a+4}, v{a+4}, v{a+5}", f"v_add_f32 v{a+6}, v{a+6}, v{a+7}",
            f"v_cvt_pk_bf16_f32 v{VM}, v{a}, v{a+2}", f"v_cvt_pk_bf16_f32 v{VM+1}, v{a+4}, v{a+6}"]
def mem_reads():
    out = []
    for ks in range(2, 8):
        out.append(f"ds_read_b128 v[{MEM+4*ks}:{MEM+4*ks+3}], v{[0,MA1,MA2,MA3][ks>>1]} offset:{L_MEM+1024*(ks&1)}")
    return out
def ex_store(): return f"buffer_store_dword v{VM}, v{MST}, {srd(WS)}, s{sEX} offen sc1"
def mem_writes(): return [f"ds_write_b128 v{G0}, v[{MEM}:{MEM+3}] offset:{L_MEM}", f"ds_write_b128 v{G0}, v[{MEM+4}:{MEM+7}] offset:{L_MEM+1024}"]

STAMP_REGS = list(range(12, 56, 2)) + list(range(86, 88, 2))
class Stamps:
    def __init__(self, A, opt): self.A, self.on, self.names, self.probe = A, opt.get("trace"), [], opt.get("probe")
    def active(self, name): return self.on and (not self.probe or name in self.probe)
    def __call__(self, name):
        if not self.active(name): return
        r = STAMP_REGS[len(self.names)]; self.names.append(name)
        self.A(f"s_memtime s[{r}:{r+1}]")

def chain_step(A, opt, slow):
    sc = " sc1" if slow else ""
    tg = "s" if slow else "f"
    ST = Stamps(A, opt)
    def STI(name):
        if not ST.active(name): return []
        r = STAMP_REGS[len(ST.names)]; ST.names.append(name); return [f"s_memtime s[{r}:{r+1}]"]
    A(f"L_step_{'slow' if slow else 'fast'}:")
    dup = opt.get("dup", 0)
    if opt.get("tot") or opt.get("enc"): A(f"s_cmp_lg_u32 s{sS}, 3\ns_cbranch_scc1 L_nt{tg}\ns_memtime s[98:99]\ns_memrealtime s[94:95]\nL_nt{tg}:")
    def nops(n):
        while n > 0:
            k = min(16, max(1, n // 4)); A(f"s_nop {k-1}"); n -= 4*k
    def polls(b, so, delays, work, tailv):
        work = list(work)
        for d in delays:
            while d > 0 and work:
                c_, t_ = work.pop(0); A(t_); d -= c_
            if d > 0: nops(d)
            for x in ld2(b, so): A(x)
        for c_, t_ in work: A(t_)
        nops(tailv[0])
        for x in tailv[1]: A(x)
    gp = opt.get("gp", [160, 140]); rp = opt.get("rp", [200, 140])
    nops(gp[0])
    polls(MEM, sMc, [0] + gp[1:], [(4, f"s_mov_b32 s{sTMO}, {TMO}")] + [(opt.get("zc", 9), x) for x in zero_accs()], (opt.get("gw", 0), [f"v_mov_b32 v{TA}, 0"] * opt.get("gwarm", 0)))
    A(f"L_gw{tg}:")
    A(f"s_waitcnt vmcnt({2*(len(gp)-1)})" + ("" if opt.get("sp") else " lgkmcnt(0)"))
    ST("gret")
    for x in chk8(MEM, TA, TB): A(x)
    sk = opt.get("skip", "")
    T = LdsTrack(A, opt.get("verbose") and not slow)
    own = [(x, []) for x in [q_(0,0), q_(0,1), q_(1,0), q_(1,1), k_(0,0), k_(0,1), k_(1,0), k_(1,1), v_(0,0), v_(0,1), v_(1,0), v_(1,1)]]
    qs = [(q_(ks, t), [f"m{ks}", f"w{ks}{t}"]) for ks in range(2, 8) for t in range(2)]
    ks_ = [(k_(ks, t), []) for t in range(2) for ks in range(2, 8)]
    vs = [(v_(ks, t), []) for ks in range(2, 8) for t in range(2)]
    def KXr(kt, j): return KX + 8*j + 4*kt
    sc_ = []
    for j in range(4):
        c0 = "0" if j == 0 else None
        sc_ += [(mf(SX, KXr(0, j), QO + 4*j, c0), [f"q{j}"]), (mf(SX + 4, KXr(1, j), QO + 4*j, c0), []), (mf(SM, KOr[j], QO + 4*j, c0), [f"k{j}"])]
    g = {}
    mw = mem_writes(); mr = [(f"m{ks}", x) for ks, x in zip(range(2, 8), mem_reads())]
    g[0] = [mw[0]]; g[1] = [mw[1], f"s_cbranch_vccnz L_gr{tg}"]
    AB = opt.get("ab", 5)
    g[AB] = ["s_waitcnt lgkmcnt(0)", "s_barrier"] + STI("pastA") + mr[:1]
    w5 = [(f"w5{i_>>1}", x) for i_, x in enumerate(wq_stage([2]))]; w7 = [(f"w7{i_>>1}", x) for i_, x in enumerate(wq_stage([3]))]
    spread(g, AB + 1, mr[1:] + w5)
    spread(g, 15, w7)
    kx = [f"ds_read_b128 v[{KXr(kt,j)}:{KXr(kt,j)+3}], v{KXA} offset:{L_KV+4096*kt+1024*j}" for j in range(4) for kt in range(2)]
    spread(g, 22, kx[:2]); spread(g, 24, kx[2:])
    g[23] = STI("qdone") + g[23]
    f = fin(QA, QA+1, QA+3)
    g[24] = ["s_nop 0"] + g[24]; g[25] = ["s_nop 0"] + g[25]
    for gi, x in zip(range(26, 32), [f[0], f[2], f[1], f[3], f[4], f[5]]): g.setdefault(gi, []).append(x)
    g[32] = [f"ds_write2_b32 v{QW}, v{QA+1}, v{QA+3} offset0:0 offset1:4"]
    fk = fin(KA, KA+1, KA+3)
    g[33] = [fk[0]]; g[34] = [fk[2]]; g[35] = ["s_nop 1"] + STI("kdone")
    g[36] = ["s_nop 2"]
    g[37] = ["s_nop 0", fk[1], fk[3], fk[4], fk[5]]
    g[38] = [f"ds_write2_b32 v{QW}, v{KA+1}, v{KA+3} offset0:128 offset1:132"] + STI("kw")
    qo = [(f"q{j}", f"ds_read_b128 v[{QO+4*j}:{QO+4*j+3}], v{QR} offset:{1024*j}") for j in range(4)]
    ko = [(f"k{j}", f"ds_read_b128 v[{KOr[j]}:{KOr[j]+3}], v{KR} offset:{1024*j}") for j in range(4)]
    vx = [("vx", f"ds_read_b128 v[{VX+4*t}:{VX+4*t+3}], v{TA} offset:{L_KV+8192+1024*t}") for t in range(2)]
    kd = kv_dma(True, True)
    place = dict(e=6, k=[8, 9, 12, 14, 15, 18], p=21, r1="D", r2="E", r3="D"); place.update(opt.get("place", {}))
    side = dict(e=ex_store(), p=f"buffer_load_dword v{PG}, off, {srd(WS)}, s{sPGA} sc1",
                r1=f"buffer_store_dwordx4 v[{NEG}:{NEG+3}], v{G0}, {srd(WS)}, s{sPr} offen{sc}",
                r2=f"buffer_store_dwordx4 v[{NEG}:{NEG+3}], v{G0}, {srd(WS)}, s{sPr} offen offset:1024{sc}",
                r3=f"buffer_store_dword v{NEG}, v{MST}, {srd(WS)}, s{sMr} offen{sc}")
    def ins(gi, x):
        it = g.setdefault(gi, [])
        tx = lambda y: y[1] if isinstance(y, tuple) else y
        pos = 0 if x.startswith("s_") else next((k_i for k_i, y in enumerate(it) if tx(y).startswith("v_")), len(it))
        it.insert(pos, x)
    nside = 0
    for k in "ep":
        if k not in sk: ins(place[k], side[k]); nside += 1
    if "d" not in sk:
        for x, gi in zip(kd, place["k"]): ins(gi, x)
        nside += 4
    if opt.get("dlat"):
        g[place["k"][0]] = STI("d0") + g[place["k"][0]]
        g[33] = ["s_waitcnt vmcnt(0)"] + STI("d1") + g[33]
    g[39] = [f"v_add_u32 v{TA}, s{sW2K}, v{KXA}"]
    g[40] = [f"s_waitcnt vmcnt({nside})", f"v_xor_b32 v{KXA}, 0x4000, v{KXA}"]
    CB = opt.get("cb", 42)
    g[CB] = ["s_waitcnt lgkmcnt(0)", "s_barrier"] + STI("pastC")
    ws_ = [(f"o{i_>>1}", x) for i_, x in enumerate(wo_stage(range(6)))]
    rd = [qo[0], ko[0], qo[1], ko[1], qo[2], ko[2], qo[3], ko[3], vx[0], vx[1]] + ws_[:6]
    at = [CB + i_ for i_ in range(10)] + [53, 54, 56, 57, 59, 59]
    for x, gi in zip(rd, at): g.setdefault(gi, []).append(x)
    vf = vfin()
    vl = vf + [f"v_mov_b32 v{ON}, 0x3f803f80", f"v_mov_b32 v{ON+1}, 0x3f803f80", f"v_mov_b64 v[{ON+2}:{ON+3}], v[{ON}:{ON+1}]", f"v_mov_b32 v{PMA+1}, 0", f"v_mov_b32 v{PMB}, 0"]
    for x, gi in zip(vl, [50, 51, 52, 52, 53, 54, 55, 55, 56, 57, 58]): g.setdefault(gi, []).append(x)
    g[59] = STI("sdone") + g[59]
    sched2(T, own + qs + ks_ + vs + sc_, g, "main")
    s = SX
    A(f"""
    v_max3_f32 v{TA}, v{s}, v{s+1}, v{s+2}
    v_max3_f32 v{TA}, v{TA}, v{s+3}, v{s+4}
    v_max3_f32 v{TB}, v{s+5}, v{s+6}, v{s+7}
    v_max_f32 v{TA}, v{TA}, v{TB}
    v_max3_f32 v{TA}, v{TA}, v{SM}, v{SM+1}
    v_mov_b32 v{TB}, v{TA}
    v_permlane16_swap_b32 v{TA}, v{TB}
    v_max_f32 v{TA}, v{TA}, v{TB}
    v_mov_b32 v{TB}, v{TA}
    v_permlane32_swap_b32 v{TA}, v{TB}
    v_max_f32 v{TA}, v{TA}, v{TB}
    v_mul_f32 v{TA}, s{sNC}, v{TA}
    """)
    ST("max")
    A(f"v_pk_fma_f32 v[{SM}:{SM+1}], v[{SM}:{SM+1}], s[{sCC}:{sCC+1}], v[{TA}:{TB}] op_sel_hi:[1,1,0]")
    for i in range(0, 8, 2): A(f"v_pk_fma_f32 v[{s+i}:{s+i+1}], v[{s+i}:{s+i+1}], s[{sCC}:{sCC+1}], v[{TA}:{TB}] op_sel_hi:[1,1,0]")
    for i in range(2): A(f"v_exp_f32 v{SM+i}, v{SM+i}")
    for i in range(2): A(f"v_exp_f32 v{s+i}, v{s+i}")
    A(f"v_cvt_pk_bf16_f32 v{PMA}, v{SM}, v{SM+1}\nv_cvt_pk_bf16_f32 v{PMB+1}, v{SM}, v{SM+1}")
    ex = [f"v_exp_f32 v{s+i}, v{s+i}" for i in range(8)]
    cv = [f"v_cvt_pk_bf16_f32 v{PX+i}, v{s+2*i}, v{s+2*i+1}" for i in range(4)]
    def mf16c(acc, a, b): return f"v_mfma_f32_16x16x16_bf16 {R(acc,4)}, {R(a,2)}, {R(b,2)}, 0"
    A(ex[2]); A(ex[3])
    A(mf16c(LX, ON, PMA)); A(ex[4]); A(cv[0])
    A(mf16c(OX, VM, PMA)); A(ex[5]); A(cv[1])
    A(mf16c(OX + 4, VM, PMB)); A(ex[6]); A(ex[7]); A(cv[2]); A(cv[3])
    ST("exp")
    T.wait(["vx"])
    A(mf(LX, ON, PX)); T.emit(ws_[6]); A(f"v_mov_b64 v[{NEG}:{NEG+1}], -1")
    A(mf(OX, VX, PX)); T.emit(ws_[7]); A(f"v_mov_b64 v[{NEG+2}:{NEG+3}], -1")
    A(mf(OX + 4, VX + 4, PX)); A(f"v_mov_b64 v[{ZZ}:{ZZ+1}], 0")
    ST("pvm")
    A(f"v_rcp_f32 v{TA}, v{LX}")
    for i in range(0, 8, 2): A(f"v_pk_mul_f32 v[{OX+i}:{OX+i+1}], v[{OX+i}:{OX+i+1}], v[{TA}:{TB}] op_sel_hi:[1,0]")
    for i in range(4): A(f"v_cvt_pk_bf16_f32 v{SM+i}, v{OX+i}, v{OX+4+i}")
    A(f"ds_write_b128 v{OW}, v[{SM}:{SM+3}]")
    A(f"v_mfma_f32_32x32x8_bf16 v[{MEM}:{MEM+15}], v[{ZZ}:{ZZ+1}], v[{ZZ}:{ZZ+1}], 0")
    ST("preD")
    for k, pl in place.items():
        if pl == "D": A(side[k])
    A(f"v_mfma_f32_32x32x8_bf16 v[{MEM+16}:{MEM+31}], v[{ZZ}:{ZZ+1}], v[{ZZ}:{ZZ+1}], 0")
    A("s_waitcnt lgkmcnt(0)\ns_barrier")
    ST("pastD")
    A(f"ds_read_b128 v[{OO}:{OO+3}], v{LB} offset:{L_OB}\nds_read_b128 v[{OO+4}:{OO+7}], v{LB} offset:{L_OB+1024}")
    for k, pl in place.items():
        if pl == "E": A(side[k])
    A(f"s_add_u32 s{sPr}, s{sPc}, s{sH13}")
    A("s_waitcnt lgkmcnt(1)")
    ST("wo0")
    def wo(tau, k2): return sm(MEM + 4*tau, OO + 4*k2, WO_res(tau, k2) if tau < 5 else WOS[2*(tau-5)+k2])
    def wfin(tau):
        a = MEM + 4*tau; d = MEM + 8*(tau >> 1) + (tau & 1)
        return [f"v_add_f32 v{a}, v{a}, v{a+1}", f"v_add_f32 v{a+2}, v{a+2}, v{a+3}", f"v_cvt_pk_bf16_f32 v{d}, v{a}, v{a+2}"]
    def sst(k): return f"buffer_store_dwordx2 v[{MEM+8*k}:{MEM+8*k+1}], v{SCAT}, {srd(WS)}, s{[sPc, sP1, sP2, sP3][k]} offen{sc}"
    ws_ = [x[1] for x in ws_]
    g = {0: ["s_waitcnt lgkmcnt(0)"], 1: ["s_nop 0", ws_[8]], 2: ["s_nop 0", ws_[9]], 3: ["s_nop 0", ws_[10]]}
    for tau in range(6):
        w = wfin(tau); g[2*tau+4] = ["s_nop 0", w[0]]; g[2*tau+5] = ["s_nop 0"] + w[1:]
    g[4][0] = ws_[11]
    g[8][0] = sst(0); g[12][0] = sst(1); g[13][0] = "s_waitcnt lgkmcnt(0)"
    sched(A, [wo(tau, k2) for tau in range(8) for k2 in range(2)], g)
    A(sst(2))
    for x in wfin(6) + wfin(7): A(x)
    A(sst(3))
    ST("scat")
    SEL, RA, RP = MEM + 4, MEM + 20, MEM + 8
    book = f"""s_mov_b32 s{sMr}, s{sMc}
    s_mov_b32 s{sMc}, s{sMn}
    s_add_u32 s{sMn}, s{sMn}, 8192
    s_and_b32 s{sMn}, s{sMn}, 0x7fff
    s_xor_b32 s{sPc}, s{sPc}, 0x40000
    s_xor_b32 s{sP1}, s{sP1}, 0x40000
    s_xor_b32 s{sP2}, s{sP2}, 0x40000
    s_xor_b32 s{sP3}, s{sP3}, 0x40000
    s_add_u32 s{sKV}, s{sKV}, {32*16384}
    s_add_u32 s{sVV}, s{sKV}, 8192
    s_xor_b32 s{sKXD}, s{sKXD}, 0x4000
    s_xor_b32 s{sVXD}, s{sVXD}, 0x4000
    s_add_u32 s{sEX}, s{sEX}, 8192
    s_add_u32 s{sT0}, s{sS}, 3
    s_lshr_b32 s{sKVT}, s{sT0}, 2
    s_min_u32 s{sKVT}, s{sKVT}, 15
    s_mov_b32 s{sPGO}, s{sPGA}
    s_add_u32 s{sS}, s{sS}, 1
    s_add_u32 s{sT0}, s{sS}, 3
    s_and_b32 s{sT0}, s{sT0}, 3
    s_lshl_b32 s{sT0}, s{sT0}, 2
    s_add_u32 s{sPGA}, s{sT0}, s{sPRGKV}""".split("\n")
    if opt.get("trace"): A(f"s_mov_b32 s79, s{sTMO}")
    work = [(11, f"ds_read_b128 v[{SEL}:{SEL+3}], v{LB} offset:{L_SEL}")] + [(11, x) for x in wq_stage([0, 1])] + [(4, x) for x in book]
    nsp = opt.get("sp", 0)
    if nsp:
        work += [(4, "s_waitcnt lgkmcnt(0)"), (4, f"s_add_u32 s{sT0}, s{sVV}, s{sW2K}")]
        work += [(4, f"s_buffer_load_dword s89, {srd(WS)}, s{sT0} offset:{128*i_:#x}") for i_ in range(nsp)]
    polls(RP, sPr, rp, work, (opt.get("rw", 0), [f"v_mov_b32 v{TA}, 0"] * opt.get("rwarm", 0)))
    A(f"L_rw{tg}:")
    A(f"s_waitcnt vmcnt({2*(len(rp)-1)})" + ("" if nsp else " lgkmcnt(0)"))
    ST("rret")
    for x in chk8(RP, TA, TB): A(x)
    A(mf(RA, SEL, RP, "0")); A(mf(RA, SEL, RP + 4))
    A(f"s_cbranch_vccnz L_rr{tg}")
    A(f"v_readfirstlane_b32 s{sT1}, v{PG}")
    A(f"""
    v_add_f32_dpp v{RA}, v{RA}, v{RA} row_shr:4 row_mask:0xf bank_mask:0xf
    v_add_f32_dpp v{RA+1}, v{RA+1}, v{RA+1} row_shr:4 row_mask:0xf bank_mask:0xf
    v_add_f32_dpp v{RA}, v{RA}, v{RA} row_shr:8 row_mask:0xf bank_mask:0xf
    v_add_f32_dpp v{RA+1}, v{RA+1}, v{RA+1} row_shr:8 row_mask:0xf bank_mask:0xf
    v_cvt_pk_bf16_f32 v{VM}, v{RA}, v{RA+1}
    buffer_store_dword v{VM}, v{MST}, {srd(WS)}, s{sMc} offen{sc}
    """)
    ST("red")
    if not opt.get("no_kv_wait"):
        A(f"""
        s_cmp_gt_u32 s{sT1}, s{sKVT}
        s_cbranch_scc0 L_kvw{tg}
        L_kvok{tg}:
        """)
    ST("end")
    if opt.get("trace"):
        A("s_waitcnt lgkmcnt(0)")
        for i in range(len(ST.names)): A(f"v_writelane_b32 v{TA}, s{STAMP_REGS[i]}, {i}")
        A(f"v_writelane_b32 v{TA}, s{sTMO}, 31")
        A(f"v_writelane_b32 v{TA}, s79, 30")
        if not ST.probe or len(ST.probe) > 2: open("stamps.txt", "w").write(" ".join(ST.names))
        A(f"""s_lshl_b32 s{sT0}, s{sS}, 14
        s_lshl_b32 s{sT1}, s{sH}, 9
        s_add_u32 s{sT0}, s{sT0}, s{sT1}
        s_lshl_b32 s{sT1}, s{sW}, 7
        s_add_u32 s{sT0}, s{sT0}, s{sT1}
        s_add_u32 s{sT0}, s{sT0}, {WS_TRC - 16384}
        v_lshrrev_b32 v{TB}, 2, v{LB}
        s_mov_b32 exec_hi, 0
        buffer_store_dword v{TA}, v{TB}, {srd(WS)}, s{sT0} offen
        s_mov_b64 exec, -1""")
    A(f"s_cmp_lt_u32 s{sS}, 63\ns_cbranch_scc1 L_step_{'slow' if slow else 'fast'}\ns_branch L_last")
    A(f"L_gr{tg}:")
    retry(A, MEM, sMc, f"L_gw{tg}", post=[f"v_mov_b64 v[{r}:{r+1}], 0" for r in range(QA, QA+8, 2)])
    A(f"L_rr{tg}:")
    retry(A, RP, sPr, f"L_rw{tg}")
    if not opt.get("no_kv_wait"):
        A(f"""
        L_kvw{tg}:
        buffer_load_dword v{PG}, off, {srd(WS)}, s{sPGO} sc1
        s_sub_u32 s{sTMO}, s{sTMO}, 1
        s_cmp_eq_u32 s{sTMO}, 0
        s_cbranch_scc1 L_fail
        s_waitcnt vmcnt(0)
        v_readfirstlane_b32 s{sT1}, v{PG}
        s_cmp_gt_u32 s{sT1}, s{sKVT}
        s_cbranch_scc0 L_kvw{tg}
        s_branch L_kvok{tg}
        """)

def chain_last(A, opt):
    A("L_last:")
    A(ex_store())
    tl(A, opt, 7, TA)
    dtl(A, opt, 12, TA)
    if opt.get("tot"):
        A(f"""
        s_memtime s[100:101]
        s_memrealtime s[92:93]
        s_waitcnt lgkmcnt(0)
        s_sub_u32 s100, s100, s98
        s_sub_u32 s92, s92, s94
        v_mov_b32 v{TA}, s100
        v_mov_b32 v{TB}, s92
        s_mov_b64 exec, 1
        buffer_store_dword v{TA}, off, {srd(DBG)}, 0 offset:56
        buffer_store_dword v{TB}, off, {srd(DBG)}, 0 offset:52
        """)
    enc = opt.get("enc")
    if enc:
        A("s_memtime s[86:87]\ns_memrealtime s[92:93]\ns_waitcnt lgkmcnt(0)")
        if enc == 1: A("s_sub_u32 s86, s94, s100")
        if enc == 2: A("s_sub_u32 s86, s92, s94\ns_lshr_b32 s86, s86, 1")
        if enc == 3: A("s_sub_u32 s86, s86, s98\ns_lshr_b32 s86, s86, 6")
        if enc == 4: A("s_mov_b32 s86, 0")
        A("""
        s_add_u32 s86, s86, 1000
        s_add_u32 s86, s86, s92
        L_enc:
        s_memrealtime s[92:93]
        s_waitcnt lgkmcnt(0)
        s_sub_u32 s87, s92, s86
        s_cmp_lt_i32 s87, 0
        s_cbranch_scc1 L_enc
        """)
    A("s_branch L_end")

def chain(A, opt):
    chain_init(A, opt)
    chain_step(A, opt, False)
    chain_step(A, opt, True)
    chain_last(A, opt)
```

```python
from asmlib import *
from layout import *
KNAME = "gated_mix__memory_aug_recurrent_mem_tr__swiglu_ffn__prompt_kernel"
sW = 3
WS, DBG, XS, WQ, WK, WV, WO, M0S, WG, WU, WD, GW, OUT = (4, 8, 12, 16, 20, 24, 28, 32, 36, 40, 44, 48, 52)
sXCC, sIDX, sGRP, sTMO = 56, 57, 58, 59
def srd(b): return f"s[{b}:{b+3}]"
CH_ALL = 160
TMO = 4000000

def weave(A, mf, oth, per=2, lead=0):
    oth = list(oth)
    for _ in range(lead):
        if oth: A(oth.pop(0))
    for m in mf:
        A(m)
        for _ in range(per):
            if oth: A(oth.pop(0))
    for o in oth: A(o)

def prologue(A, opt):
    if opt.get("tl") or opt.get("dtl") or opt.get("enc"): A("s_memrealtime s[100:101]")
    A(f"""
    s_cmp_ge_u32 s2, 256
    s_cbranch_scc1 L_end
    s_load_dwordx2 s[{WS}:{WS+1}], s[0:1], 112
    s_load_dwordx2 s[{DBG}:{DBG+1}], s[0:1], 104
    s_load_dwordx2 s[{XS}:{XS+1}], s[0:1], 0
    s_load_dwordx2 s[{M0S}:{M0S+1}], s[0:1], 8
    s_load_dwordx2 s[{WQ}:{WQ+1}], s[0:1], 16
    s_load_dwordx2 s[{WK}:{WK+1}], s[0:1], 24
    s_load_dwordx2 s[{WV}:{WV+1}], s[0:1], 32
    s_load_dwordx2 s[{WO}:{WO+1}], s[0:1], 40
    s_load_dwordx2 s[{WG}:{WG+1}], s[0:1], 64
    s_load_dwordx2 s[{WU}:{WU+1}], s[0:1], 72
    s_load_dwordx2 s[{WD}:{WD+1}], s[0:1], 80
    s_load_dwordx2 s[{GW}:{GW+1}], s[0:1], 88
    s_load_dwordx2 s[{OUT}:{OUT+1}], s[0:1], 96
    s_getreg_b32 s{sXCC}, hwreg(HW_REG_XCC_ID)
    s_and_b32 s{sXCC}, s{sXCC}, 7
    v_lshrrev_b32 v1, 6, v0
    v_readfirstlane_b32 s{sW}, v1
    """)
    if opt.get("fake_xcc"):
        A(f"s_mul_i32 s{sXCC}, s2, 37\ns_lshr_b32 s{sXCC}, s{sXCC}, 3\ns_and_b32 s{sXCC}, s{sXCC}, 7\ns_and_b32 s60, s2, 3\ns_cmp_eq_u32 s60, 1\ns_cselect_b32 s{sXCC}, 5, s{sXCC}")
    sizes = {WS: 0x10000000, DBG: 256, XS: 2097152, M0S: 8192, WQ: 4194304, WK: 4194304, WV: 4194304, WO: 4194304,
             WG: 512*1376*2, WU: 512*1376*2, WD: 512*1376*2, GW: 1024, OUT: 2097152}
    for b, n in sizes.items():
        A(f"s_mov_b32 s{b+2}, {n}\ns_mov_b32 s{b+3}, 0x20000")
    A(f"""
    s_waitcnt lgkmcnt(0)
    s_cmp_lg_u32 s{sW}, 0
    s_cbranch_scc1 L_noticket
    s_lshl_b32 s60, s{sXCC}, 2
    s_cmp_eq_u32 s{sXCC}, 0
    s_cselect_b32 s60, {4*DBG_C0}, s60
    v_mov_b32 v4, 1
    s_mov_b64 exec, 1
    buffer_atomic_add v4, off, {srd(DBG)}, s60 sc0
    s_mov_b64 exec, -1
    L_noticket:
    """)
    if opt.get("warm", 0):
        A(f"""
        s_cmp_eq_u32 s{sXCC}, 0
        s_cbranch_scc1 L_nowarm
        v_lshlrev_b32 v2, 4, v0
        s_lshl_b32 s60, s2, 14
        s_add_u32 s61, s60, 4096
        s_add_u32 s62, s60, 8192
        s_add_u32 s63, s60, 12288
        """)
        n = 0
        for m_ in (WK, WV, WO, WQ):
            for k_ in range(4):
                A(f"buffer_load_dwordx4 v[64:67], v2, {srd(m_)}, s{60+k_} offen"); n += 1
        A("L_nowarm:")
    A(f"""
    s_cmp_lg_u32 s2, 0
    s_cbranch_scc1 L_nozero
    v_lshlrev_b32 v2, 4, v0
    v_mov_b32 v8, 0
    v_mov_b32 v9, 0
    v_mov_b32 v10, 0
    v_mov_b32 v11, 0
    s_mov_b32 s60, {WS_PRG}
    s_mov_b32 s61, {WS_PRG + 0x1000}
    s_mov_b32 s62, {WS_PRG + 0x2000}
    s_mov_b32 s63, {WS_PRG + 0x3000}
    buffer_store_dwordx4 v[8:11], v2, {srd(WS)}, s60 offen sc1
    buffer_store_dwordx4 v[8:11], v2, {srd(WS)}, s61 offen sc1
    buffer_store_dwordx4 v[8:11], v2, {srd(WS)}, s62 offen sc1
    buffer_store_dwordx4 v[8:11], v2, {srd(WS)}, s63 offen sc1
    s_waitcnt vmcnt(0)
    L_nozero:
    s_waitcnt vmcnt({16 if opt.get("warm", 0) else 0})
    s_cmp_lg_u32 s{sXCC}, 0
    s_cbranch_scc1 L_tw
    s_waitcnt vmcnt(0)
    L_tw:
    s_cmp_lg_u32 s{sW}, 0
    s_cbranch_scc1 L_noticket2
    v_mov_b32 v5, 0
    s_mov_b64 exec, 1
    ds_write_b32 v5, v4
    s_mov_b64 exec, -1
    s_waitcnt lgkmcnt(0)
    L_noticket2:
    s_barrier
    v_mov_b32 v5, 0
    ds_read_b32 v4, v5
    s_cmp_lg_u32 s2, 0
    s_cbranch_scc1 L_nozero2
    v_mov_b32 v6, 1
    s_mov_b64 exec, 1
    buffer_store_dword v6, off, {srd(DBG)}, 0 offset:{DBG_INIT} sc1
    s_mov_b64 exec, -1
    L_nozero2:
    s_waitcnt lgkmcnt(0)
    v_readfirstlane_b32 s{sIDX}, v4
    s_mov_b32 s{sGRP}, s{sXCC}
    s_barrier
    v_and_b32 v0, 63, v0
    s_cmp_lt_u32 s{sIDX}, 32
    s_cbranch_scc0 L_overflow
    L_role:
    """)
    tl(A, opt, 1, 4)
    if opt.get('tl'):
        A(f"v_mov_b32 v4, s100\ns_lshl_b32 s96, s{sGRP}, 5\ns_add_u32 s96, s96, s{sIDX}\ns_lshl_b32 s96, s96, 6\ns_add_u32 s96, s96, {WS_TRC + 2*MB}\nbuffer_store_dword v4, off, {srd(WS)}, s96")

def overflow(A, opt):
    A(f"""
    L_overflow:
    s_mov_b32 s{sTMO}, {TMO}
    v_lshlrev_b32 v2, 2, v0
    L_ovf_wait:
    buffer_load_dword v3, v2, {srd(DBG)}, 0 offen sc1
    s_sub_u32 s{sTMO}, s{sTMO}, 1
    s_cmp_eq_u32 s{sTMO}, 0
    s_cbranch_scc1 L_fail
    s_waitcnt vmcnt(0)
    s_mov_b32 s60, 0
    """)
    for x in range(8):
        A(f"v_readlane_b32 s{62+x}, v3, {x if x else DBG_C0}\ns_add_u32 s60, s60, s{62+x}")
    A(f"""
    s_cmp_lt_u32 s60, 256
    s_cbranch_scc1 L_ovf_wait
    s_cmp_lg_u32 s{sW}, 0
    s_cbranch_scc1 L_ovf_t
    v_mov_b32 v4, 1
    v_mov_b32 v5, 0
    s_mov_b64 exec, 1
    buffer_atomic_add v4, off, {srd(DBG)}, 0 offset:{DBG_OVF} sc0
    s_waitcnt vmcnt(0)
    ds_write_b32 v5, v4
    s_mov_b64 exec, -1
    s_waitcnt lgkmcnt(0)
    L_ovf_t:
    s_barrier
    v_mov_b32 v5, 0
    ds_read_b32 v4, v5
    s_waitcnt lgkmcnt(0)
    v_readfirstlane_b32 s61, v4
    s_barrier
    """)
    for x in range(8):
        A(f"""
        s_min_u32 s70, s{62+x}, 32
        s_sub_u32 s71, 32, s70
        s_mov_b32 s{sGRP}, {x}
        s_add_u32 s{sIDX}, s70, s61
        s_cmp_lt_u32 s61, s71
        s_cbranch_scc1 L_role
        s_sub_u32 s61, s61, s71
        """)
    A("s_branch L_end")

def wait_init(A, tag, vt=3):
    A(f"""
    s_mov_b32 s{sTMO}, {TMO}
    L_wi_{tag}:
    buffer_load_dword v{vt}, off, {srd(DBG)}, 0 offset:{DBG_INIT} sc1
    s_sub_u32 s{sTMO}, s{sTMO}, 1
    s_cmp_eq_u32 s{sTMO}, 0
    s_cbranch_scc1 L_fail
    s_waitcnt vmcnt(0)
    v_readfirstlane_b32 s85, v{vt}
    s_cmp_eq_u32 s85, 0
    s_cbranch_scc1 L_wi_{tag}
    """)

def epilogue(A):
    A(f"""
    L_fail:
    s_waitcnt vmcnt(0) lgkmcnt(0)
    s_mov_b64 exec, -1
    s_lshl_b32 s60, s{sGRP}, 8
    s_add_u32 s60, s60, s{sIDX}
    s_add_u32 s60, s60, 0x10000
    v_mov_b32 v4, s60
    s_mov_b64 exec, 1
    buffer_store_dword v4, off, {srd(DBG)}, 0 offset:{DBG_ERR} sc1
    L_end:
    s_endpgm
    """)

def tl(A, opt, slot, vt, cond=None):
    if not opt.get("tl"): return
    lab = A.newlabel("L_tl")
    if cond: A(f"s_lshr_b32 s96, s{cond[0]}, 1\ns_cmp_lg_u32 s96, {cond[1]}\ns_cbranch_scc1 {lab}")
    A(f"""
    s_cmp_lg_u32 s{sW}, 0
    s_cbranch_scc1 {lab}
    s_memrealtime s[96:97]
    s_waitcnt lgkmcnt(0)
    v_mov_b32 v{vt}, s96
    s_lshl_b32 s96, s{sGRP}, 5
    s_add_u32 s96, s96, s{sIDX}
    s_lshl_b32 s96, s96, 6
    s_add_u32 s96, s96, {WS_TRC + 2*MB + 4*slot}
    s_mov_b64 exec, 1
    buffer_store_dword v{vt}, off, {srd(WS)}, s96
    s_mov_b64 exec, -1
    {lab}:
    """)

def tlseq(A, opt, vt, sidx, shift, area):
    if not opt.get("tl"): return
    lab = A.newlabel("L_ts")
    A(f"""
    s_cmp_lg_u32 s{sW}, 0
    s_cbranch_scc1 {lab}
    s_memrealtime s[96:97]
    s_waitcnt lgkmcnt(0)
    v_mov_b32 v{vt}, s96
    s_lshl_b32 s96, s{sGRP}, 5
    s_add_u32 s96, s96, s{sIDX}
    s_lshl_b32 s96, s96, 8
    s_lshr_b32 s97, s{sidx}, {shift}
    s_lshl_b32 s97, s97, 2
    s_add_u32 s96, s96, s97
    s_add_u32 s96, s96, {WS_TRC + (4+area)*MB}
    s_mov_b64 exec, 1
    buffer_store_dword v{vt}, off, {srd(WS)}, s96
    s_mov_b64 exec, -1
    {lab}:
    """)

def dtl(A, opt, word, vt):
    if not opt.get("dtl"): return
    A(f"""
    s_memrealtime s[96:97]
    s_waitcnt lgkmcnt(0)
    s_sub_u32 s96, s96, s100
    v_mov_b32 v{vt}, s96
    s_mov_b64 exec, 1
    buffer_atomic_umax v{vt}, off, {srd(DBG)}, 0 offset:{4*word}
    s_mov_b64 exec, -1
    """)
```

```python
from common import *
import struct
def f2u(x): return struct.unpack("<I", struct.pack("<f", x))[0]
def mf(acc, a, b, c=None): return f"v_mfma_f32_16x16x32_bf16 {R(acc,4)}, {R(a,4)}, {R(b,4)}, {R(acc,4) if c is None else c}"
def mf16(acc, a, b, c=None): return f"v_mfma_f32_16x16x16_bf16 {R(acc,4)}, {R(a,2)}, {R(b,2)}, {R(acc,4) if c is None else c}"
H0, H1 = 0x8000, 0x18000
sT0, sT1, sT2, sT3 = 73, 74, 75, 76

def lane_decode(A):
    A("""
    v_and_b32 v20, 15, v0               ; n
    v_lshrrev_b32 v21, 4, v0            ; g
    v_and_b32 v22, 3, v0                ; n&3
    v_bfe_u32 v23, v0, 2, 2             ; n>>2
    """)

def x_dma(A, vXG, sSrc, lds_base_sgpr):
    for i in range(8):
        A(f"s_add_u32 m0, s{lds_base_sgpr}, {1024*i - 64*i}")
        A(f"buffer_load_dwordx4 v{vXG}, {srd(XS)}, s{sSrc} offen offset:{64*i} lds")

def load_weights(A, mats, rs, sCol, dst, extra_before, vD0=26, vD1=27, vTR=28, vT=29, defer=0):
    A(f"""
    s_lshl_b32 s{sT0}, s{sW}, 4
    v_add_u32 v24, s{sT0}, v21
    s_mov_b32 s{sT0}, {rs}
    v_mul_lo_u32 v24, v24, s{sT0}
    v_add_u32 v24, s{sCol}, v24
    v_lshlrev_b32 v25, 1, v21
    v_xor_b32 v25, v25, v20
    v_lshl_add_u32 v{vD0}, v25, 4, v24
    v_xor_b32 v25, 8, v25
    v_lshl_add_u32 v{vD1}, v25, 4, v24
    v_lshl_add_u32 v24, v21, 3, v23
    v_lshlrev_b32 v24, 8, v24
    v_and_b32 v25, 1, v22
    v_lshl_add_u32 v24, v25, 3, v24
    v_and_b32 v25, 1, v21
    v_lshlrev_b32 v25, 3, v25
    v_lshl_add_u32 v25, v23, 1, v25
    v_lshrrev_b32 v{vT}, 1, v22
    s_lshl_b32 s{sT0}, s{sW}, 2
    v_add_u32 v{vT}, s{sT0}, v{vT}
    v_xor_b32 v25, v25, v{vT}
    v_lshl_add_u32 v{vTR}, v25, 4, v24
    s_lshl_b32 s{sT1}, s{sW}, 12
    """)
    groups = [(mi, hf) for mi in range(len(mats)) for hf in range(2)]
    def dma(gi):
        mi, hf = groups[gi]
        hb = H0 if gi % 2 == 0 else H1
        for ch in range(4):
            for i in range(4):
                A(f"s_add_u32 m0, s{sT1}, {hb + ch*16384 + i*1024}")
                A(f"s_mov_b32 s{sT0}, {((4*hf+ch)*64 + 4*i) * rs}")
                A(f"buffer_load_dwordx4 v{vD0 if i < 2 else vD1}, {srd(mats[mi])}, s{sT0} offen lds")
    def trs(gi):
        mi, hf = groups[gi]
        for t in range(2):
            A(f"v_xor_b32 v{vT}, {32*t}, v{vTR}\nv_add_u32 v{vT}, {H0 if gi % 2 == 0 else H1}, v{vT}")
            for ch in range(4):
                for h2 in range(2):
                    for q1 in range(2):
                        A(f"ds_read_b64_tr_b16 {R(dst(mi, 8*hf+2*ch+h2, t)+2*q1, 2)}, v{vT} offset:{ch*16384 + h2*8192 + q1*1024}")
    dma(0); dma(1)
    for gi in range(len(groups) - defer):
        A(f"s_waitcnt vmcnt({16 if gi + 1 < len(groups) else 0})\ns_barrier")
        trs(gi)
        A("s_waitcnt lgkmcnt(0)\ns_barrier")
        if gi + 2 < len(groups): dma(gi + 2)
    def finish():
        for gi in range(len(groups) - defer, len(groups)): trs(gi)
        A("s_waitcnt lgkmcnt(0)\ns_barrier")
    return finish

def flag(A, vT, sVal, sAddr):
    lab = A.newlabel("L_fl")
    A(f"s_cmp_lg_u32 s{sW}, 0\ns_cbranch_scc1 {lab}")
    A(f"v_mov_b32 v{vT}, s{sVal}\ns_mov_b64 exec, 1\nbuffer_store_dword v{vT}, off, {srd(WS)}, s{sAddr} sc1\ns_mov_b64 exec, -1\n{lab}:")

def arole(A, opt):
    LB, XG, XR, QWr, QRd, G0, MW, MR, NINF, KMW = 0, 1, 2, 3, 4, 5, 6, 7, 8, 9
    T0, T1 = 10, 11
    PSEL = 124
    ONES = 12
    ACC = 16
    XF = 64
    XB, QK0, MEMF, KMF = 0x0, 0x10000, 0x20000, 0x24000
    sH, sC_, sI, sXS, sXL, sKV, sPKV, sPO, sEX, sOH, sC, sNC, sLO, sHI, sCNT = 60, 61, 62, 63, 64, 65, 66, 67, 68, 69, 70, 71, 72, 77, 78
    sM0, sML = 86, 94
    def Wf(mi, kk, t): return 128 + 128*mi + 8*kk + 4*t
    A(f"""
    L_arole:
    s_sub_u32 s{sH}, s{sGRP}, 1
    s_lshl_b32 s{sH}, s{sH}, 2
    s_cmp_eq_u32 s{sGRP}, 6
    s_cselect_b32 s{sH}, 24, s{sH}
    s_lshr_b32 s{sT0}, s{sIDX}, 2
    s_add_u32 s{sH}, s{sH}, s{sT0}
    s_and_b32 s{sC_}, s{sIDX}, 3
    """)
    lane_decode(A)
    A(f"""
    v_lshlrev_b32 v{XG}, 10, v20
    v_lshl_add_u32 v{XG}, v21, 4, v{XG}
    s_lshr_b32 s{sT0}, s{sW}, 1
    s_lshl_b32 s{sT0}, s{sT0}, 14
    s_and_b32 s{sT1}, s{sW}, 1
    s_lshl_b32 s{sT1}, s{sT1}, 9
    s_add_u32 s{sT0}, s{sT0}, s{sT1}
    v_add_u32 v{XG}, s{sT0}, v{XG}
    s_lshl_b32 s{sXS}, s{sC_}, 15
    s_lshl_b32 s{sXL}, s{sW}, 13
    """)
    x_dma(A, XG, sXS, sXL)
    A(f"s_lshl_b32 s{sT2}, s{sH}, 8")
    finish_w = load_weights(A, [WK, WV, WQ], 8192, sT2, Wf, 8, vTR=126, vT=127, defer=2)
    A(f"""
    s_add_u32 s{sXS}, s{sXS}, {4*32768}
    s_xor_b32 s{sXL}, s{sXL}, 0x8000
    ; masks
    v_lshlrev_b32 v24, 2, v21
    """)
    for i in range(4):
        A(f"v_add_u32 v25, {i}, v24\nv_cmp_le_u32 s[{sM0+2*i}:{sM0+2*i+1}], v25, v20")
    c = (128 ** -0.5) * 1.4426950408889634
    A(f"""
    s_mov_b32 s{sML}, -1
    s_mov_b32 s{sML+1}, 0
    s_mov_b32 s{sC}, {f2u(c):#x}
    s_mov_b32 s{sNC}, {f2u(-c):#x}
    v_and_b32 v24, 1, v20
    v_mov_b32 v{PSEL}, 0x05040100
    v_mov_b32 v25, 0x03020706
    v_cmp_eq_u32 vcc, 1, v24
    v_cndmask_b32 v{PSEL}, v{PSEL}, v25, vcc
    v_lshlrev_b32 v{MW}, 9, v24
    v_lshrrev_b32 v24, 1, v21
    v_lshl_add_u32 v{MW}, v24, 12, v{MW}
    v_lshrrev_b32 v24, 1, v20
    v_lshl_add_u32 v{MW}, v24, 4, v{MW}
    v_and_b32 v24, 1, v21
    v_lshl_add_u32 v{MW}, v24, 8, v{MW}
    s_lshl_b32 s{sT0}, s{sW}, 10
    s_add_u32 s{sT0}, s{sT0}, {MEMF}
    v_add_u32 v{MW}, s{sT0}, v{MW}
    s_lshl_b32 s{sT0}, s{sW}, 12
    s_add_u32 s{sT0}, s{sT0}, {MEMF}
    v_lshlrev_b32 v{LB}, 4, v0
    v_add_u32 v{MR}, {MEMF}, v{LB}
    v_mov_b32 v{XR}, v{LB}
    s_lshl_b32 s{sT1}, s{sW}, 10
    s_add_u32 s{sT2}, s{sT1}, {QK0}
    v_add_u32 v{QWr}, s{sT2}, v{LB}
    v_add_u32 v{QRd}, {QK0}, v{LB}
    s_add_u32 s{sT2}, s{sT1}, {KMF}
    v_add_u32 v{KMW}, s{sT2}, v{LB}
    s_lshl_b32 s{sT1}, s{sW}, 11
    v_add_u32 v{G0}, s{sT1}, v{LB}
    v_mov_b32 v{NINF}, 0xff800000
    v_mov_b32 v{ONES}, 0x3f803f80
    v_mov_b32 v{ONES+1}, 0x3f803f80
    v_mov_b32 v{ONES+2}, 0x3f803f80
    v_mov_b32 v{ONES+3}, 0x3f803f80
    v_add_u32 v125, s{sT0}, v{LB}
    ; scalars
    s_lshl_b32 s{sT0}, s{sC_}, 5
    s_add_u32 s{sT0}, s{sT0}, s{sH}          ; seg*32+h
    s_lshl_b32 s{sKV}, s{sT0}, 14
    s_add_u32 s{sKV}, s{sKV}, {WS_KV}
    s_lshl_b32 s{sPO}, s{sC_}, 6
    s_add_u32 s{sPO}, s{sPO}, {WS_PRG + PRG_C}
    s_lshl_b32 s{sPKV}, s{sH}, 7
    s_lshl_b32 s{sT0}, s{sC_}, 2
    s_add_u32 s{sPKV}, s{sPKV}, s{sT0}
    s_add_u32 s{sPKV}, s{sPKV}, {WS_PRG + PRG_KV}
    s_lshl_b32 s{sEX}, s{sC_}, 13
    s_add_u32 s{sEX}, s{sEX}, {WS_EX}
    s_mul_i32 s{sOH}, s{sC_}, {2*OH_TT}
    s_lshl_b32 s{sT0}, s{sH}, 12
    s_add_u32 s{sOH}, s{sOH}, s{sT0}
    s_lshl_b32 s{sT0}, s{sW}, 10
    s_add_u32 s{sOH}, s{sOH}, s{sT0}
    s_add_u32 s{sOH}, s{sOH}, {WS_OH}
    s_mov_b32 s{sI}, 0
    s_mov_b32 s{sCNT}, 0
    """)
    tl(A, opt, 2, T0)
    KAc = lambda t, tt: ACC + 8*tt + 4*t
    QAc = lambda t, tt: ACC + 16 + 8*tt + 4*t
    VAc = lambda tt, t: ACC + 32 + 8*t + 4*tt
    A("s_branch L_a_proj1")
    A("L_a_proj:")
    A("s_waitcnt vmcnt(8)\ns_barrier")
    A("L_a_proj1:")
    def xr(kk): return [f"ds_read_b128 v[{XF+8*(kk&1)+4*tt}:{XF+8*(kk&1)+4*tt+3}], v{XR} offset:{16384*tt+1024*kk}" for tt in range(2)]
    def xpass(body):
        for x in xr(0): A(x)
        for kk in range(16):
            if kk < 15:
                for x in xr(kk+1): A(x)
            A(f"s_waitcnt lgkmcnt({2 if kk < 15 else 0})")
            c0 = "0" if kk == 0 else None
            for tt in range(2):
                for t in range(2): body(kk, tt, t, XF + 8*(kk&1) + 4*tt, c0)
    def kvb(kk, tt, t, X, c0): A(mf(KAc(t, tt), Wf(0, kk, t), X, c0)); A(mf(VAc(tt, t), X, Wf(1, kk, t), c0))
    xpass(kvb)
    PK = 80
    for tt in range(2):
        for i in range(4): A(f"v_cvt_pk_bf16_f32 v{PK+4*tt+i}, v{KAc(0,tt)+i}, v{KAc(1,tt)+i}")
    for t in range(2):
        for i in range(4): A(f"v_cvt_pk_bf16_f32 v{PK+8+4*t+i}, v{VAc(0,t)+2*i}, v{VAc(0,t)+2*i+1}")
    A(f"s_lshl_b32 s{sT0}, s{sW}, 10\ns_add_u32 s{sT0}, s{sT0}, s{sKV}\ns_add_u32 s{sT1}, s{sT0}, 4096\ns_add_u32 s{sT2}, s{sKV}, 8192")
    A(f"buffer_store_dwordx4 v[{PK}:{PK+3}], v{LB}, {srd(WS)}, s{sT0} offen sc1")
    A(f"buffer_store_dwordx4 v[{PK+4}:{PK+7}], v{LB}, {srd(WS)}, s{sT1} offen sc1")
    A(f"buffer_store_dwordx4 v[{PK+8}:{PK+11}], v{G0}, {srd(WS)}, s{sT2} offen sc1")
    A(f"buffer_store_dwordx4 v[{PK+12}:{PK+15}], v{G0}, {srd(WS)}, s{sT2} offen offset:1024 sc1")
    A(f"s_add_u32 s{sCNT}, s{sCNT}, 1\ns_cmp_eq_u32 s{sCNT}, 1\ns_cbranch_scc0 L_a_q")
    wait_init(A, "a", T0)
    A("s_barrier")
    flag(A, T0, sCNT, sPKV)
    tl(A, opt, 3, T0)
    finish_w()
    x_dma(A, XG, sXS, sXL)
    A(f"""
    s_add_u32 s{sXS}, s{sXS}, {4*32768}
    s_xor_b32 s{sXL}, s{sXL}, 0x8000
    v_mov_b64 v[120:121], 0
    v_mov_b64 v[122:123], 0
    ds_write_b128 v125, v[120:123]
    ds_write_b128 v125, v[120:123] offset:1024
    ds_write_b128 v125, v[120:123] offset:2048
    ds_write_b128 v125, v[120:123] offset:3072
    s_waitcnt lgkmcnt(0)
    L_a_q:
    """)
    xpass(lambda kk, tt, t, X, c0: A(mf(QAc(t, tt), Wf(2, kk, t), X, c0)))
    A("s_waitcnt vmcnt(0)\ns_barrier")
    flag(A, T0, sCNT, sPKV)
    x_dma(A, XG, sXS, sXL)
    for tt in range(2):
        for i in range(4): A(f"v_cvt_pk_bf16_f32 v{PK+16+4*tt+i}, v{QAc(0,tt)+i}, v{QAc(1,tt)+i}")
    for i, off in enumerate([0, 4096, 16384, 20480, 8192, 12288]):
        A(f"ds_write_b128 v{QWr}, v[{PK+4*i}:{PK+4*i+3}] offset:{off}")
    A(f"""
    s_add_u32 s{sXS}, s{sXS}, {4*32768}
    s_xor_b32 s{sXL}, s{sXL}, 0x8000
    v_xor_b32 v{XR}, 0x8000, v{XR}
    s_add_u32 s{sKV}, s{sKV}, {4*32*16384}
    v_xor_b32 v{QWr}, 0x8000, v{QWr}
    s_waitcnt lgkmcnt(0)
    s_barrier
    s_cmp_eq_u32 s{sCNT}, 1
    s_cbranch_scc0 L_a_att
    """)
    if not opt.get("no_ch_wait"):
        A(f"""
        s_mov_b32 s{sTMO}, {TMO}
        L_a_chw:
        buffer_load_dword v{T0}, off, {srd(DBG)}, 0 offset:{DBG_CH} sc1
        s_sub_u32 s{sTMO}, s{sTMO}, 1
        s_cmp_eq_u32 s{sTMO}, 0
        s_cbranch_scc1 L_fail
        s_waitcnt vmcnt(0)
        v_readfirstlane_b32 s{sT0}, v{T0}
        s_cmp_lt_u32 s{sT0}, {CH_ALL}
        s_cbranch_scc1 L_a_chw
        """)
    A("s_branch L_a_proj")
    A("L_a_att:")
    Q, K, S, MB, KMa, VMa, V = 16, 48, 80, 48, 64, 72, 112
    S00, S01, S11, SM0, SM1 = S, S+4, S+8, S+12, S+16
    for i in range(8): A(f"ds_read_b128 v[{Q+4*i}:{Q+4*i+3}], v{QRd} offset:{8192+1024*i}")
    for i in range(4): A(f"ds_read_b128 v[{K+4*i}:{K+4*i+3}], v{QRd} offset:{1024*i}")
    A("s_waitcnt lgkmcnt(0)")
    for i in range(4, 8): A(f"ds_read_b128 v[{K+4*i}:{K+4*i+3}], v{QRd} offset:{1024*i}")
    A(f"s_lshl_b32 s{sT0}, s{sW}, 10\nv_add_u32 v{T0}, s{sT0}, v{QRd}")
    for t in range(2): A(f"ds_read_b128 v[{V+4*t}:{V+4*t+3}], v{T0} offset:{16384+4096*t}")
    for j in range(4):
        c0 = "0" if j == 0 else None
        A(mf(S00, K+4*j, Q+4*j, c0)); A(mf(S01, K+4*j, Q+16+4*j, c0))
    A("s_waitcnt lgkmcnt(0)")
    for j in range(4): A(mf(S11, K+16+4*j, Q+16+4*j, "0" if j == 0 else None))
    EXB = 100
    A(f"""
    s_mov_b32 s{sTMO}, {TMO}
    s_cmp_lg_u32 s{sW}, 0
    s_cbranch_scc1 L_a_pre2
    s_lshl_b32 s{sT0}, s{sH}, 8
    s_add_u32 s{sT0}, s{sT0}, s{sEX}
    s_mov_b64 exec, 1
    L_a_pre:
    buffer_load_dword v{T0}, off, {srd(WS)}, s{sT0} sc1
    s_sub_u32 s{sTMO}, s{sTMO}, 1
    s_cmp_eq_u32 s{sTMO}, 0
    s_cbranch_scc1 L_fail
    s_waitcnt vmcnt(0)
    v_cmp_eq_u32 vcc, -1, v{T0}
    s_cbranch_vccz L_a_pre1
    s_sleep {opt.get("asleep", 4)}
    s_branch L_a_pre
    L_a_pre1:
    s_mov_b64 exec, -1
    L_a_pre2:
    s_barrier
    L_a_poll:
    buffer_load_dwordx4 v[{EXB}:{EXB+3}], v{G0}, {srd(WS)}, s{sEX} offen sc1
    buffer_load_dwordx4 v[{EXB+4}:{EXB+7}], v{G0}, {srd(WS)}, s{sEX} offen offset:1024 sc1
    s_sub_u32 s{sTMO}, s{sTMO}, 1
    s_cmp_eq_u32 s{sTMO}, 0
    s_cbranch_scc1 L_fail
    s_waitcnt vmcnt(0)
    v_max3_u32 v{T0}, v{EXB}, v{EXB+1}, v{EXB+2}
    v_max3_u32 v{T1}, v{EXB+3}, v{EXB+4}, v{EXB+5}
    v_max3_u32 v{T0}, v{T0}, v{EXB+6}, v{EXB+7}
    v_max_u32 v{T0}, v{T0}, v{T1}
    v_cmp_eq_u32 vcc, -1, v{T0}
    s_cbranch_vccz L_a_got
    s_sleep 2
    s_branch L_a_poll
    L_a_got:
    """)
    tl(A, opt, 6, T0)
    for ld in range(2):
        b = EXB + 4*ld; d = 120
        for c_ in range(4): A(f"v_mov_b32_dpp v{d+c_}, v{b+c_} quad_perm:[1,0,3,2] row_mask:0xf bank_mask:0xf")
        for c_ in range(4): A(f"v_perm_b32 v{b+c_}, v{d+c_}, v{b+c_}, v{PSEL}")
        A(f"ds_write_b128 v{MW}, v[{b}:{b+3}] offset:{8192*ld}")
    A("s_waitcnt lgkmcnt(0)\ns_barrier")
    def mr(kk): return f"ds_read_b128 v[{MB+4*(kk&3)}:{MB+4*(kk&3)+3}], v{MR} offset:{1024*kk}"
    for kk in range(3): A(mr(kk))
    for kk in range(16):
        if kk + 3 < 16: A(mr(kk+3))
        A(f"s_waitcnt lgkmcnt({min(3, 15-kk)})")
        c0 = "0" if kk == 0 else None
        M = MB + 4*(kk&3)
        for t in range(2): A(mf(KMa+4*t, Wf(0, kk, t), M, c0))
        for t in range(2): A(mf(VMa+4*t, M, Wf(1, kk, t), c0))
    for i in range(4): A(f"v_cvt_pk_bf16_f32 v{EXB+i}, v{KMa+i}, v{KMa+4+i}")
    A(f"ds_write_b128 v{KMW}, v[{EXB}:{EXB+3}]")
    VMp = 104
    for t in range(2):
        for i in range(2): A(f"v_cvt_pk_bf16_f32 v{VMp+2*t+i}, v{VMa+4*t+2*i}, v{VMa+4*t+2*i+1}")
    for i in range(4):
        A(f"v_cndmask_b32 v{S00+i}, v{NINF}, v{S00+i}, s[{sM0+2*i}:{sM0+2*i+1}]")
        A(f"v_cndmask_b32 v{S11+i}, v{NINF}, v{S11+i}, s[{sM0+2*i}:{sM0+2*i+1}]")
    A("s_waitcnt lgkmcnt(0)\ns_barrier")
    for j in range(4): A(f"ds_read_b128 v[{MB+4*j}:{MB+4*j+3}], v{MR} offset:{KMF-MEMF+1024*j}")
    for j in range(4):
        A(f"s_waitcnt lgkmcnt({3-j})")
        c0 = "0" if j == 0 else None
        A(mf(SM0, MB+4*j, Q+4*j, c0)); A(mf(SM1, MB+4*j, Q+16+4*j, c0))
    M0_, M1_, U0, U1 = 108, 109, 110, 111
    A(f"v_max3_f32 v{M0_}, v{S00}, v{S00+1}, v{S00+2}\nv_max_f32 v{M0_}, v{M0_}, v{S00+3}")
    A(f"v_max3_f32 v{M1_}, v{S01}, v{S01+1}, v{S01+2}\nv_max3_f32 v{M1_}, v{M1_}, v{S01+3}, v{S11}")
    A(f"v_max3_f32 v{M1_}, v{M1_}, v{S11+1}, v{S11+2}\nv_max_f32 v{M1_}, v{M1_}, v{S11+3}")
    for i in range(8): A(f"v_cndmask_b32 v{SM0+i}, v{NINF}, v{SM0+i}, s[{sML}:{sML+1}]")
    for m, sm_ in ((M0_, SM0), (M1_, SM1)):
        A(f"v_max3_f32 v{m}, v{m}, v{sm_}, v{sm_+1}\nv_max3_f32 v{m}, v{m}, v{sm_+2}, v{sm_+3}")
    for sw in ("16", "32"):
        A(f"v_mov_b32 v{U0}, v{M0_}\nv_mov_b32 v{U1}, v{M1_}")
        A(f"v_permlane{sw}_swap_b32 v{M0_}, v{U0}\nv_permlane{sw}_swap_b32 v{M1_}, v{U1}")
        A(f"v_max_f32 v{M0_}, v{M0_}, v{U0}\nv_max_f32 v{M1_}, v{M1_}, v{U1}")
    A(f"v_mul_f32 v{M0_}, s{sNC}, v{M0_}\nv_mul_f32 v{M1_}, s{sNC}, v{M1_}")
    for b, m in ((S00, M0_), (S01, M1_), (S11, M1_), (SM0, M0_), (SM1, M1_)):
        for i in range(4): A(f"v_fma_f32 v{b+i}, v{b+i}, s{sC}, v{m}")
    for i in range(20): A(f"v_exp_f32 v{S+i}, v{S+i}")
    P = 16
    for d, b in ((16, S00), (20, S01), (22, S11), (24, SM0), (26, SM1)):
        A(f"v_cvt_pk_bf16_f32 v{d}, v{b}, v{b+1}\nv_cvt_pk_bf16_f32 v{d+1}, v{b+2}, v{b+3}")
    O, L = 32, 48
    A(mf16(L, ONES, 16, "0")); A(mf(L+4, ONES, 20, "0"))
    for t in range(2): A(mf16(O+4*t, V+4*t, 16, "0")); A(mf(O+8+4*t, V+4*t, 20, "0"))
    A(mf16(L, ONES, 24)); A(mf16(L+4, ONES, 26))
    for t in range(2): A(mf16(O+4*t, VMp+2*t, 24)); A(mf16(O+8+4*t, VMp+2*t, 26))
    A(f"v_rcp_f32 v{U0}, v{L}\nv_rcp_f32 v{U1}, v{L+4}")
    for tt in range(2):
        for i in range(8): A(f"v_mul_f32 v{O+8*tt+i}, v{O+8*tt+i}, v{U1 if tt else U0}")
        for i in range(4): A(f"v_cvt_pk_bf16_f32 v{56+4*tt+i}, v{O+8*tt+2*i}, v{O+8*tt+2*i+1}")
        if tt: A(f"s_add_u32 s{sT0}, s{sOH}, {OH_TT}")
        A(f"buffer_store_dwordx4 v[{56+4*tt}:{59+4*tt}], v{LB}, {srd(WS)}, s{sT0 if tt else sOH} offen sc1")
    A(f"""
    s_add_u32 s{sI}, s{sI}, 1
    s_add_u32 s{sEX}, s{sEX}, {4*8192}
    s_add_u32 s{sOH}, s{sOH}, {8*OH_TT}
    v_xor_b32 v{QRd}, 0x8000, v{QRd}
    s_waitcnt vmcnt(0)
    s_barrier
    """)
    A(f"""
    s_cmp_lg_u32 s{sW}, 0
    s_cbranch_scc1 L_a_arr
    v_mov_b32 v{T0}, 1
    s_mov_b64 exec, 1
    buffer_atomic_add v{T0}, off, {srd(WS)}, s{sPO} sc0
    s_waitcnt vmcnt(0)
    v_readfirstlane_b32 s{sT0}, v{T0}
    s_cmp_lg_u32 s{sT0}, 31
    s_cbranch_scc1 L_a_arr1
    s_add_u32 s{sT0}, s{sPO}, {PRG_O - PRG_C}
    buffer_store_dword v{T0}, off, {srd(WS)}, s{sT0} sc1
    L_a_arr1:
    s_mov_b64 exec, -1
    L_a_arr:
    s_add_u32 s{sPO}, s{sPO}, 256
    """)
    tlseq(A, opt, T0, sI, 0, 0)
    A(f"""
    s_cmp_lt_u32 s{sCNT}, 16
    s_cbranch_scc1 L_a_proj
    s_cmp_lt_u32 s{sI}, 16
    s_cbranch_scc1 L_a_att
    """)
    tl(A, opt, 7, T0)
    A("s_branch L_end")

def frole(A, opt):
    LB, XG, XR, T0 = 0, 1, 2, 3
    ACC, XF = 16, 64
    sFG, sCF, sXS, sXL, sOH, sPH, sCNT, sNL = 60, 61, 63, 64, 69, 67, 78, 70
    def Wf(mi, kk, t): return 256 + 128*mi + 8*kk + 4*t
    A(f"""
    L_frole:
    s_cmp_lt_u32 s{sIDX}, 22
    s_cbranch_scc1 L_f_go
    s_cmp_ge_u32 s{sIDX}, 30
    s_cbranch_scc1 L_end
    s_sub_u32 s{sT0}, s{sIDX}, 22
    s_lshl_b32 s{sT0}, s{sT0}, 16
    s_lshl_b32 s{sT1}, s{sW}, 14
    s_add_u32 s{sT0}, s{sT0}, s{sT1}
    s_add_u32 s{sT0}, s{sT0}, {WS_EX}
    v_lshlrev_b32 v1, 4, v0
    v_mov_b64 v[4:5], -1
    v_mov_b64 v[6:7], -1
    """)
    for k_ in range(16):
        A(f"buffer_store_dwordx4 v[4:7], v1, {srd(WS)}, s{sT0} offen offset:{1024*(k_%4)} sc1")
        if k_ % 4 == 3: A(f"s_add_u32 s{sT0}, s{sT0}, 4096")
    A(f"""
    v_mov_b32 v8, 1
    s_waitcnt vmcnt(0)
    s_mov_b64 exec, 1
    buffer_atomic_add v8, off, {srd(DBG)}, 0 offset:{DBG_CH}
    s_branch L_end
    L_f_go:
    s_cmp_ge_u32 s{sIDX}, 11
    s_cselect_b32 s{sFG}, 1, 0
    s_mul_i32 s{sT0}, s{sFG}, 11
    s_sub_u32 s{sCF}, s{sIDX}, s{sT0}
    """)
    lane_decode(A)
    A(f"""
    v_lshlrev_b32 v{XG}, 10, v20
    v_lshl_add_u32 v{XG}, v21, 4, v{XG}
    s_lshr_b32 s{sT0}, s{sW}, 1
    s_lshl_b32 s{sT0}, s{sT0}, 14
    s_and_b32 s{sT1}, s{sW}, 1
    s_lshl_b32 s{sT1}, s{sT1}, 9
    s_add_u32 s{sT0}, s{sT0}, s{sT1}
    v_add_u32 v{XG}, s{sT0}, v{XG}
    s_lshl_b32 s{sXS}, s{sFG}, 15
    s_lshl_b32 s{sXL}, s{sW}, 13
    """)
    x_dma(A, XG, sXS, sXL)
    A(f"s_lshl_b32 s{sT2}, s{sCF}, 8")
    load_weights(A, [WG, WU], 2752, sT2, Wf, 8)
    A(f"s_add_u32 s{sXS}, s{sXS}, {2*32768}\ns_xor_b32 s{sXL}, s{sXL}, 0x8000")
    x_dma(A, XG, sXS, sXL)
    A(f"""
    s_add_u32 s{sXS}, s{sXS}, {2*32768}
    s_xor_b32 s{sXL}, s{sXL}, 0x8000
    v_lshlrev_b32 v{LB}, 4, v0
    v_mov_b32 v{XR}, v{LB}
    s_mul_i32 s{sOH}, s{sFG}, {2*OH_TT}
    s_lshl_b32 s{sT0}, s{sCF}, 12
    s_add_u32 s{sOH}, s{sOH}, s{sT0}
    s_lshl_b32 s{sT0}, s{sW}, 10
    s_add_u32 s{sOH}, s{sOH}, s{sT0}
    s_add_u32 s{sOH}, s{sOH}, {WS_OH + 128*1024}
    s_lshl_b32 s{sPH}, s{sFG}, 7
    s_lshl_b32 s{sT0}, s{sCF}, 2
    s_add_u32 s{sPH}, s{sPH}, s{sT0}
    s_add_u32 s{sPH}, s{sPH}, {WS_PRG + PRG_H}
    s_mov_b32 s{sNL}, {f2u(-1.4426950408889634):#x}
    s_mov_b32 s{sCNT}, 0
    """)
    tl(A, opt, 2, T0)
    wait_init(A, "f", T0)
    GA = lambda t, tt: ACC + 8*tt + 4*t
    UA = lambda t, tt: ACC + 16 + 8*tt + 4*t
    A("L_f_loop:")
    A("s_waitcnt vmcnt(10)\ns_barrier")
    def xr(kk): return [f"ds_read_b128 v[{XF+8*(kk&1)+4*tt}:{XF+8*(kk&1)+4*tt+3}], v{XR} offset:{16384*tt+1024*kk}" for tt in range(2)]
    for x in xr(0): A(x)
    for kk in range(16):
        if kk < 15:
            for x in xr(kk+1): A(x)
        A(f"s_waitcnt lgkmcnt({2 if kk < 15 else 0})")
        c0 = "0" if kk == 0 else None
        for tt in range(2):
            X = XF + 8*(kk&1) + 4*tt
            for t in range(2):
                A(mf(GA(t, tt), Wf(0, kk, t), X, c0)); A(mf(UA(t, tt), Wf(1, kk, t), X, c0))
    A("s_waitcnt vmcnt(8)\ns_barrier")
    flag(A, T0, sCNT, sPH)
    E = 80
    for i in range(16): A(f"v_mul_f32 v{E+i}, s{sNL}, v{ACC+i}")
    for i in range(16): A(f"v_exp_f32 v{E+i}, v{E+i}")
    for i in range(16): A(f"v_add_f32 v{E+i}, 1.0, v{E+i}")
    for i in range(16): A(f"v_rcp_f32 v{E+i}, v{E+i}")
    for i in range(16): A(f"v_mul_f32 v{ACC+i}, v{ACC+i}, v{ACC+16+i}")
    for i in range(16): A(f"v_mul_f32 v{ACC+i}, v{ACC+i}, v{E+i}")
    for tt in range(2):
        for i in range(4): A(f"v_cvt_pk_bf16_f32 v{96+4*tt+i}, v{ACC+8*tt+2*i}, v{ACC+8*tt+2*i+1}")
    A(f"s_add_u32 s{sT0}, s{sOH}, {OH_TT}")
    A(f"buffer_store_dwordx4 v[96:99], v{LB}, {srd(WS)}, s{sOH} offen sc1")
    A(f"buffer_store_dwordx4 v[100:103], v{LB}, {srd(WS)}, s{sT0} offen sc1")
    x_dma(A, XG, sXS, sXL)
    A(f"""
    s_add_u32 s{sXS}, s{sXS}, {2*32768}
    s_xor_b32 s{sXL}, s{sXL}, 0x8000
    v_xor_b32 v{XR}, 0x8000, v{XR}
    s_add_u32 s{sOH}, s{sOH}, {4*OH_TT}
    s_add_u32 s{sCNT}, s{sCNT}, 1
    s_cmp_lt_u32 s{sCNT}, 32
    s_cbranch_scc1 L_f_loop
    s_waitcnt vmcnt(0)
    s_barrier
    """)
    flag(A, T0, sCNT, sPH)
    tl(A, opt, 7, T0)
    A("s_branch L_end")

def orole(A, opt):
    LB, XG, PA, RW, RR, RL, OA, T0, T1, HL = 0, 1, 2, 3, 4, 5, 6, 7, 8, 9
    ACC = 12
    BUF, NB = 32, 15
    def Wo_(k, t): return 256 + 8*k + 4*t
    def Wd_(k, t): return 152 + 8*k + 4*t
    GWF = 240
    sOG, sCB, sSEG, sO, sHh, sXO, sOUT, sNL, sPAR, sSTG = 60, 61, 62, 63, 64, 65, 66, 70, 67, 68
    A(f"""
    L_orole:
    s_sub_u32 s{sOG}, s{sGRP}, 1
    s_and_b32 s{sCB}, s{sIDX}, 15
    """)
    lane_decode(A)
    A(f"""
    v_lshrrev_b32 v24, 2, v0
    v_lshlrev_b32 v26, 10, v24
    v_lshl_add_u32 v26, v22, 4, v26
    s_lshl_b32 s{sT0}, s{sCB}, 6
    v_add_u32 v26, s{sT0}, v26
    s_lshl_b32 s{sT0}, s{sW}, 20
    v_add_u32 v27, s{sT0}, v26
    s_mul_i32 s{sT0}, s{sW}, {352*1024}
    v_add_u32 v26, s{sT0}, v26
    v_lshl_add_u32 v28, v21, 2, v23
    v_lshlrev_b32 v28, 6, v28
    v_lshl_add_u32 v28, v22, 3, v28
    s_lshl_b32 s{sSTG}, s{sW}, 15
    v_add_u32 v28, s{sSTG}, v28
    s_and_b32 s{sPAR}, s{sCB}, 1
    s_lshl_b32 s{sPAR}, s{sPAR}, 19
    v_lshlrev_b32 v24, 4, v21
    s_lshl_b32 s{sT0}, s{sW}, 8
    """)
    if opt.get("odelay", 0):
        wait_init(A, "o0", 30)
        A(f"""
        s_lshl_b32 s{sT1}, s{sCB}, 7
        s_add_u32 s{sT1}, s{sT1}, {WS_PRG + PRG_KV}
        s_mov_b32 s{sTMO}, {TMO}
        L_o_dly:
        s_sleep 16
        buffer_load_dword v30, off, {srd(WS)}, s{sT1} sc1
        s_sub_u32 s{sTMO}, s{sTMO}, 1
        s_cmp_eq_u32 s{sTMO}, 0
        s_cbranch_scc1 L_fail
        s_waitcnt vmcnt(0)
        v_readfirstlane_b32 s{sT2}, v30
        s_cmp_lt_u32 s{sT2}, {opt.get("odelay", 0)}
        s_cbranch_scc1 L_o_dly
        """)
    for k in range(4): A(f"buffer_load_dwordx4 v[{GWF+4*k}:{GWF+4*k+3}], v24, {srd(GW)}, s{sT0} offen offset:{64*k}")
    chunks = [(WD, 0, 8), (WD, 8, 3)] + [(WO, 8*i, 8) for i in range(4)]
    def dma(ci):
        mat, k0, nk = chunks[ci]
        for i in range(2*nk):
            A(f"s_add_u32 m0, s{sSTG}, {(ci & 1)*16384 + 1024*i}")
            A(f"s_mov_b32 s{sT0}, {(32*k0 + 16*i) * 1024}")
            if mat == WO: A(f"s_xor_b32 s{sT0}, s{sT0}, s{sPAR}")
            A(f"buffer_load_dwordx4 v{27 if mat == WO else 26}, {srd(mat)}, s{sT0} offen lds")
    dma(0); dma(1)
    for ci, (mat, k0, nk) in enumerate(chunks):
        A(f"s_waitcnt vmcnt({2*chunks[ci+1][2] if ci + 1 < len(chunks) else 0})")
        for k in range(nk):
            for t in range(2):
                for q1 in range(2):
                    d = (Wo_ if mat == WO else Wd_)(k0 + k, t) + 2*q1
                    A(f"ds_read_b64_tr_b16 {R(d,2)}, v28 offset:{(ci&1)*16384 + 2048*k + 1024*q1 + 32*t}")
        A("s_waitcnt lgkmcnt(0)")
        if ci + 2 < len(chunks): dma(ci + 2)
    A(f"""
    s_barrier
    v_lshlrev_b32 v{XG}, 10, v20
    v_lshl_add_u32 v{XG}, v21, 4, v{XG}
    s_lshl_b32 s{sT0}, s{sW}, 8
    v_add_u32 v{XG}, s{sT0}, v{XG}
    v_lshlrev_b32 v{PA}, 2, v0
    s_lshl_b32 s{sT0}, s{sW}, 2
    v_add_u32 v24, s{sT0}, v21               ; token
    v_lshlrev_b32 v{RL}, 4, v24
    v_bfe_u32 v25, v20, 1, 2
    v_lshl_add_u32 v{RR}, v25, 8, v{RL}
    v_lshrrev_b32 v25, 3, v20
    v_lshl_add_u32 v{RR}, v25, 10, v{RR}
    v_and_b32 v25, 1, v20
    v_lshl_add_u32 v{RR}, v25, 3, v{RR}
    v_lshlrev_b32 v{OA}, 10, v24
    v_lshl_add_u32 v{OA}, v20, 2, v{OA}
    s_lshl_b32 s{sT0}, s{sCB}, 6
    v_add_u32 v{OA}, s{sT0}, v{OA}
    v_lshlrev_b32 v{LB}, 4, v0
    s_mul_i32 s{sT0}, s{sW}, 5120
    v_add_u32 v{RW}, s{sT0}, v{LB}
    s_cmp_eq_u32 s{sW}, 3
    s_cselect_b32 s{sT0}, 0x7f000000, 0
    v_add_u32 v{HL}, s{sT0}, v{LB}
    s_lshr_b32 s{sSEG}, s{sOG}, 1
    s_mul_i32 s{sO}, s{sOG}, {OH_TT}
    s_add_u32 s{sO}, s{sO}, {WS_OH}
    s_mul_i32 s{sT0}, s{sW}, {11*1024}
    s_add_u32 s{sHh}, s{sO}, s{sT0}
    s_add_u32 s{sHh}, s{sHh}, {128*1024}
    s_lshl_b32 s{sT0}, s{sW}, 15
    s_add_u32 s{sO}, s{sO}, s{sT0}
    s_lshl_b32 s{sXO}, s{sOG}, 14
    s_mov_b32 s{sNL}, {f2u(-1.4426950408889634):#x}
    """)
    tl(A, opt, 2, T0)
    wait_init(A, "o", T0)
    sHOK, sPOA, sPHA = 71, 72, 77
    def flag_addr():
        return f"""s_lshl_b32 s{sPOA}, s{sSEG}, 6
        s_add_u32 s{sPOA}, s{sPOA}, {WS_PRG + PRG_O}
        s_mov_b32 s{sT3}, 0"""
    def spin(tag, sAddr, nl, sThr, first_loaded):
        A(f"""
        s_mov_b32 s{sTMO}, {TMO}
        s_mov_b32 exec_lo, {(1 << nl) - 1:#x}
        s_mov_b32 exec_hi, 0
        {f"s_branch L_o_{tag}c" if first_loaded else ""}
        L_o_{tag}:
        buffer_load_dword v{T0}, v{PA}, {srd(WS)}, s{sAddr} offen sc1
        s_sub_u32 s{sTMO}, s{sTMO}, 1
        s_cmp_eq_u32 s{sTMO}, 0
        s_cbranch_scc1 L_fail
        s_waitcnt vmcnt(0)
        L_o_{tag}c:
        v_cmp_ge_u32 vcc, s{sThr}, v{T0}
        s_cbranch_vccz L_o_{tag}ok
        s_sleep {opt.get("osleep", 3)}
        s_branch L_o_{tag}
        L_o_{tag}ok:
        s_mov_b64 exec, -1
        """)
    nowait = opt.get("no_oh_wait")
    XH = BUF + 4*NB
    def xh_loads(tag):
        if not nowait:
            A(f"s_lshr_b32 s{sT2}, s{sSEG}, 1\ns_cmp_lt_u32 s{sT2}, s{sHOK}\ns_cbranch_scc1 L_o_hk{tag}")
            spin("h" + tag, sPHA, 11, sT2, False)
            A(f"v_readlane_b32 s{sHOK}, v{T0}, 0")
            for l in range(1, 11): A(f"v_readlane_b32 s{sT0}, v{T0}, {l}\ns_min_u32 s{sHOK}, s{sHOK}, s{sT0}")
            A(f"L_o_hk{tag}:")
        A(flag_addr())
        A(f"buffer_load_dword v{T0}, off, {srd(WS)}, s{sPOA} sc1")
        for k in range(4): A(f"buffer_load_dwordx4 v[{XH+4*k}:{XH+4*k+3}], v{XG}, {srd(XS)}, s{sXO} offen offset:{64*k}")
        for k in range(11):
            if k % 4 == 0 and k: A(f"s_add_u32 s{sT0}, s{sHh}, {1024*k}")
            b = XH + 16 + 4*k
            A(f"buffer_load_dwordx4 v[{b}:{b+3}], v{HL if k == 10 else LB}, {srd(WS)}, s{sHh if k < 4 else sT0} offen offset:{1024*(k%4)} sc1")
    A(f"""
    s_mov_b32 s{sHOK}, 0
    s_and_b32 s{sPHA}, s{sSEG}, 1
    s_lshl_b32 s{sPHA}, s{sPHA}, 7
    s_add_u32 s{sPHA}, s{sPHA}, {WS_PRG + PRG_H}
    """)
    xh_loads("a")
    sO2 = 69
    A(f"""
    s_lshr_b32 s{sPAR}, s{sPAR}, 5
    s_xor_b32 s{sO2}, s{sPAR}, 0x4000
    s_add_u32 s{sO2}, s{sO2}, s{sO}
    s_add_u32 s{sO}, s{sO}, s{sPAR}
    s_mov_b32 s79, 0
    v_mov_b32 v11, 0x10000
    v_mov_b32 v10, -1
    ds_write_b32 v11, v10
    s_waitcnt vmcnt(0) lgkmcnt(0)
    s_barrier
    L_o_task:
    """)
    B = lambda i_: BUF + 4*(i_ % NB)
    def ol(k, force=False):
        if k % 4 == 0 or force: A(f"s_add_u32 s{sT1}, s{sO if k < 16 else sO2}, {1024*(k & 12)}")
        A(f"buffer_load_dwordx4 v[{B(k)}:{B(k)+3}], v{LB}, {srd(WS)}, s{sT1} offen offset:{1024*(k%4)} sc1")
    def hm():
        for k in range(4): A(mf(ACC+16, GWF+4*k, XH+4*k, "0" if k == 0 else None))
        for k in range(11):
            for t in range(2): A(mf(ACC+8+4*t, Wd_(k, t), XH+16+4*k, "0" if k == 0 else None))
    sRDY = 79
    A(f"s_cmp_eq_u32 s{sRDY}, 1\ns_cbranch_scc1 L_o_rdy")
    A("s_waitcnt vmcnt(1)")
    hm()
    if not nowait:
        A(f"s_cmp_lg_u32 s{sW}, 0\ns_cbranch_scc1 L_o_lw")
        spin("o", sPOA, 1, sT3, False)
        A(f"""
        v_mov_b32 v{T0}, s{sSEG}
        ds_write_b32 v11, v{T0}
        s_branch L_o_lwok
        L_o_lw:
        s_mov_b32 s{sTMO}, {TMO*8}
        L_o_lw1:
        s_sleep 1
        ds_read_b32 v{T0}, v11
        s_sub_u32 s{sTMO}, s{sTMO}, 1
        s_cmp_eq_u32 s{sTMO}, 0
        s_cbranch_scc1 L_fail
        s_waitcnt lgkmcnt(0)
        v_readfirstlane_b32 s{sT0}, v{T0}
        s_cmp_ge_i32 s{sT0}, s{sSEG}
        s_cbranch_scc0 L_o_lw1
        L_o_lwok:
        """)
    tl(A, opt, 6, T0)
    for k in range(NB): ol(k)
    A("s_branch L_o_go")
    A("L_o_rdy:")
    A(f"s_waitcnt vmcnt({NB+1})")
    hm()
    A("L_o_go:")
    tlseq(A, opt, 10, sSEG, 1, 0)
    A(f"""
    s_mov_b32 s{sOUT}, s{sXO}
    s_add_u32 s{sSEG}, s{sSEG}, 2
    s_add_u32 s{sHh}, s{sHh}, {4*OH_TT}
    s_add_u32 s{sXO}, s{sXO}, 65536
    """)
    PFK = opt.get("pfk", 17)
    def ostream(pf):
        extra = 0
        for k in range(32):
            issued = min(32, NB + k)
            A(f"s_waitcnt vmcnt({issued - k - 1 + extra})")
            for t in range(2): A(mf(ACC+4*t, Wo_(k, t), B(k), "0" if k == 0 else None))
            if NB + k < 32: ol(NB + k, force=(k == 0))
            if pf and k == PFK - 1:
                xh_loads("b"); extra = 16
    A(f"s_cmp_ge_u32 s{sSEG}, 64\ns_cbranch_scc1 L_o_nopf")
    assert NB + PFK >= 32
    ostream(True)
    A("s_branch L_o_fin\nL_o_nopf:")
    ostream(False)
    A("L_o_fin:")
    A(f"s_add_u32 s{sO}, s{sO}, {4*OH_TT}\ns_add_u32 s{sO2}, s{sO2}, {4*OH_TT}")
    for i_ in range(5): A(f"ds_write_b128 v{RW}, v[{ACC+4*i_}:{ACC+4*i_+3}] offset:{1024*i_}")
    A(f"""
    s_mov_b32 s{sRDY}, 0
    s_cmp_ge_u32 s{sSEG}, 64
    s_cbranch_scc1 L_o_nrdy
    s_waitcnt vmcnt(15)
    v_cmp_ge_u32 vcc, s{sT3}, v{T0}
    s_cbranch_vccnz L_o_nrdy
    s_mov_b32 s{sRDY}, 1
    v_mov_b32 v{T0}, s{sSEG}
    ds_write_b32 v11, v{T0}
    """)
    for k in range(NB): ol(k)
    A("L_o_nrdy:")
    A("s_waitcnt lgkmcnt(0)\ns_barrier")
    F = ACC
    for sw in range(4):
        A(f"ds_read_b64 v[{F+2*sw}:{F+2*sw+1}], v{RR} offset:{5120*sw}")
        A(f"ds_read_b64 v[{F+8+2*sw}:{F+9+2*sw}], v{RR} offset:{5120*sw+2048}")
        A(f"ds_read_b32 v{F+16+sw}, v{RL} offset:{5120*sw+4096}")
    A(f"""
    v_xor_b32 v{RW}, 0x8000, v{RW}
    v_xor_b32 v{RR}, 0x8000, v{RR}
    v_xor_b32 v{RL}, 0x8000, v{RL}
    s_waitcnt lgkmcnt(0)
    v_add_f32 v{F+16}, v{F+16}, v{F+17}
    v_add_f32 v{F+18}, v{F+18}, v{F+19}
    v_add_f32 v{F+16}, v{F+16}, v{F+18}
    v_mul_f32 v{F+16}, s{sNL}, v{F+16}
    v_exp_f32 v{F+16}, v{F+16}
    """)
    for b in (F, F+8):
        for i_ in range(2):
            A(f"v_add_f32 v{b+i_}, v{b+i_}, v{b+2+i_}\nv_add_f32 v{b+4+i_}, v{b+4+i_}, v{b+6+i_}\nv_add_f32 v{b+i_}, v{b+i_}, v{b+4+i_}")
    A(f"""
    v_add_f32 v{F+16}, 1.0, v{F+16}
    v_rcp_f32 v{F+16}, v{F+16}
    v_sub_f32 v{F+17}, 1.0, v{F+16}
    v_mul_f32 v{F+8}, v{F+8}, v{F+17}
    v_mul_f32 v{F+9}, v{F+9}, v{F+17}
    v_fma_f32 v{F}, v{F}, v{F+16}, v{F+8}
    v_fma_f32 v{F+1}, v{F+1}, v{F+16}, v{F+9}
    v_cvt_pk_bf16_f32 v{T1}, v{F}, v{F+1}
    buffer_store_dword v{T1}, v{OA}, {srd(OUT)}, s{sOUT} offen
    """)
    A(f"""
    s_cmp_lt_u32 s{sSEG}, 64
    s_cbranch_scc1 L_o_task
    """)
    dtl(A, opt, 8, T0)
    tl(A, opt, 7, T0)
    A("s_branch L_end")
```

```python
from common import *
L_KV, L_MEM, L_QB, L_OB, L_SEL, L_H0, L_H1 = 0x0, 0x8000, 0xA000, 0xB200, 0xBA00, 0x8000, 0x18000
L_WO, L_WQ = 0xC000, 0x18000
LB, IDX, SCAT, MST, QW, QR, KR, OW, TRQ, TRO, G0, MA1, MA2, MA3, VM, VM1 = range(16)
MEM = 16
QA, KA, VA, SM = 48, 56, 64, 72
TA, TB, PG, KXA = 76, 77, 78, 79
T0, T1 = TA, TB
BIG = 80
SX, OX, KX = 48, 56, BIG
QO, VX = MEM + 8, MEM + 24
KOr = [56, 60, MEM, MEM + 4]
ON, PMA, PMB = 64, 68, 70
LX, PX, ZZ = MEM, MEM + 8, 48
NEG, OO = 52, 64
WOS = [80, 88, 96, 104, 48, 56]
def WQ_res(p, t): return 112 + 8 * (2 * p + t)
def WQ_stg(p, t): return BIG + 16 * (p & 1) + 8 * t
def WO_res(tau, k2): return 176 + 8 * (2 * tau + k2)
def WKf(ks, t): return 256 + 8 * (2 * ks + t)
def WVf(ks, t): return 384 + 8 * (2 * ks + t)
sH, sS, sMc, sMn, sMr, sPc, sPr, sKV, sEX, sC, sNC, sPRGKV, sPRGKM, sT0, sT1, sW1K, sW2K, sOM = 60, 61, 62, 63, 64, 65, 66, 67, 68, 69, 70, 71, 72, 73, 74, 75, 76, 78
sP1, sVV, sKXD, sVXD, sP2, sPGA, sKVT, sPGO, sH13, sP3 = 80, 81, 82, 83, 77, 84, 78, 72, 75, 88
QOFF = [0, 256, 2048, 2304]
QOFW = [0, 512, 8192, 8704]
sCC = 90
sNAN, sG2 = 89, 88

def sm(acc, a, b): return f"v_smfmac_f32_16x16x64_bf16 {R(acc,4)}, {R(a,4)}, {R(b,8)}, v{IDX}"
def mf(acc, a, b, c=None): return f"v_mfma_f32_16x16x32_bf16 {R(acc,4)}, {R(a,4)}, {R(b,4)}, {R(acc,4) if c is None else c}"
def mf16(acc, a, b): return f"v_mfma_f32_16x16x16_bf16 {R(acc,4)}, {R(a,2)}, {R(b,2)}, {R(acc,4)}"
def q_(ks, t): return sm(QA + 4*t, MEM + 4*ks, WQ_res(ks >> 1, t) if ks % 2 == 0 else WQ_stg(ks >> 1, t))
def k_(ks, t): return sm(KA + 4*t, MEM + 4*ks, WKf(ks, t))
def v_(ks, t): return sm(VA + 4*t, MEM + 4*ks, WVf(ks, t))

def trq_reads(dst, base_imm, treg, add10000=False):
    out = []
    for p in range(4):
        if p == 0: out.append(f"v_mov_b32 v{treg}, v{TRQ}")
        else:
            out.append(f"v_add_u32 v{treg}, {p*16384}, v{TRQ}")
            out.append(f"v_and_b32 v{treg}, 0xffff, v{treg}")
        if add10000: out.append(f"v_add_u32 v{treg}, 0x10000, v{treg}")
        for t in range(2):
            if t: out.append(f"v_xor_b32 v{treg}, 32, v{treg}")
            for qd in range(4):
                out.append(f"ds_read_b64_tr_b16 {R(dst(p,t)+2*qd,2)}, v{treg} offset:{base_imm+QOFW[qd]}")
    return out
def tro_reads(dst, tps, treg):
    out = []
    for tp in tps:
        out.append(f"v_xor_b32 v{treg}, {32*tp}, v{TRO}")
        for k2 in range(2):
            for qd in range(4):
                out.append(f"ds_read_b64_tr_b16 {R(dst(tp,k2)+2*qd,2)}, v{treg} offset:{32768*k2+QOFF[qd]}")
    return out

def chain_init(A, opt):
    A(f"""
    L_chain:
    s_mov_b32 s{sH}, s{sIDX}
    v_and_b32 v20, 15, v0               ; n
    v_lshrrev_b32 v21, 4, v0            ; g
    v_and_b32 v22, 3, v0                ; n&3 (cc / c)
    v_bfe_u32 v23, v0, 2, 2             ; n>>2 (u / a)
    s_lshl_b32 s{sH13}, s{sH}, 13
    s_lshl_b32 s{sW2K}, s{sW}, 11
    v_lshrrev_b32 v24, 5, v0
    v_lshlrev_b32 v24, 3, v24
    s_lshl_b32 s{sT0}, s{sW}, 1
    v_add_u32 v24, s{sT0}, v24
    v_xor_b32 v24, v24, v20             ; c16
    s_lshl_b32 s{sT0}, s{sW}, 4
    v_add_u32 v25, s{sT0}, v21          ; row 16w + (l>>4)
    v_lshlrev_b32 v27, 10, v25
    v_lshrrev_b32 v28, 3, v24
    v_lshl_add_u32 v27, v28, 8, v27
    v_and_b32 v28, 7, v24
    v_lshl_add_u32 v27, v28, 4, v27
    s_lshl_b32 s{sT0}, s{sH}, 17
    v_add_u32 v27, s{sT0}, v27
    s_and_b32 s{sC}, s{sW}, 1
    s_lshr_b32 s{sT0}, s{sW}, 1
    s_lshl_b32 s{sT0}, s{sT0}, 7
    s_lshl_b32 s{sT1}, s{sC}, 4
    s_add_u32 s{sT0}, s{sT0}, s{sT1}
    v_add_u32 v25, s{sT0}, v21
    v_and_b32 v24, 1, v21
    v_lshlrev_b32 v24, 1, v24
    s_lshl_b32 s{sT1}, s{sC}, 2
    v_add_u32 v24, s{sT1}, v24
    v_xor_b32 v24, v24, v20
    v_lshlrev_b32 v26, 13, v25
    v_lshl_add_u32 v26, v24, 4, v26
    s_lshl_b32 s{sT0}, s{sH}, 8
    v_add_u32 v26, s{sT0}, v26          ; v26: i even
    v_xor_b32 v34, 128, v26             ; v34: i odd
    s_lshl_b32 s{sT1}, s{sW}, 12
    v_lshrrev_b32 v28, 1, v21
    s_bfe_u32 s{sT0}, s{sH}, 0x20001
    s_lshl_b32 s{sT0}, s{sT0}, 1
    v_add_u32 v28, s{sT0}, v28
    v_lshlrev_b32 v28, 10, v28
    v_and_b32 v29, 1, v21
    v_lshl_add_u32 v28, v29, 1, v28
    v_lshl_add_u32 v28, v22, 2, v28
    s_lshr_b32 s{sT0}, s{sH}, 3
    s_lshl_b32 s{sT0}, s{sT0}, 8
    s_lshl_b32 s{sC}, s{sW}, 6
    s_add_u32 s{sT0}, s{sT0}, s{sC}
    s_and_b32 s{sC}, s{sH}, 1
    s_lshl_b32 s{sC}, s{sC}, 4
    s_add_u32 s{sT0}, s{sT0}, s{sC}
    buffer_load_ushort v30, v28, {srd(M0S)}, s{sT0} offen
    buffer_load_ushort v31, v28, {srd(M0S)}, s{sT0} offen offset:32
    """)
    groups = {0: [(WK, 0), (WK, 1), (WV, 0), (WV, 1), (WO, 0), (WQ, 0), (WO, 1), (WQ, 1)],
              1: [(WO, 0), (WK, 0), (WK, 1), (WV, 0), (WV, 1), (WQ, 0), (WO, 1), (WQ, 1)],
              2: [(WO, 0), (WQ, 0), (WK, 0), (WK, 1), (WV, 0), (WV, 1), (WO, 1), (WQ, 1)]}[opt.get('gord', 0)]
    def dma(gi):
        mat, par = groups[gi]
        hb = L_H0 if gi % 2 == 0 else L_H1
        for sl in range(4):
            for i in range(4):
                so = (256*par + 32*sl + 4*i) * 8192 if mat != WO else (sl >> 1) * 65536 + i * 4096 + 512 * (sl & 1) + 128 * par
                A(f"s_add_u32 m0, s{sT1}, {hb + sl*16384 + i*1024}")
                A(f"s_mov_b32 s{sT0}, {so}")
                A(f"buffer_load_dwordx4 v{27 if mat == WO else 34 if i & 1 else 26}, {srd(mat)}, s{sT0} offen lds")
    dma(0)
    A(f"""
    v_and_b32 v28, 1, v0
    v_mov_b32 v{IDX}, 0x4444
    v_mov_b32 v29, 0xeeee
    v_cmp_eq_u32 vcc, 1, v28
    v_cndmask_b32 v{IDX}, v{IDX}, v29, vcc
    v_lshrrev_b32 v28, 3, v0
    v_lshlrev_b32 v{SCAT}, 13, v28
    v_and_b32 v28, 7, v20
    v_lshl_add_u32 v{SCAT}, v28, 3, v{SCAT}
    s_lshl_b32 s{sT0}, s{sW}, 16
    s_lshl_b32 s{sC}, s{sH}, 6
    s_add_u32 s{sT0}, s{sT0}, s{sC}
    v_add_u32 v{SCAT}, s{sT0}, v{SCAT}
    v_lshlrev_b32 v{MST}, 4, v21
    v_lshl_add_u32 v{MST}, v22, 2, v{MST}
    s_lshr_b32 s{sT0}, s{sH}, 3
    s_lshl_b32 s{sT0}, s{sT0}, 9
    s_add_u32 s{sT0}, s{sT0}, s{sW2K}
    s_and_b32 s{sC}, s{sH}, 1
    s_lshl_b32 s{sC}, s{sC}, 8
    s_add_u32 s{sT0}, s{sT0}, s{sC}
    s_bfe_u32 s{sC}, s{sH}, 0x20001
    s_lshl_b32 s{sC}, s{sC}, 6
    s_add_u32 s{sT0}, s{sT0}, s{sC}
    v_add_u32 v{MST}, s{sT0}, v{MST}
    v_mov_b32 v29, 0x7fffff00
    v_cmp_le_u32 vcc, 12, v20
    v_cndmask_b32 v{MST}, v29, v{MST}, vcc
    v_and_b32 v28, 1, v23
    v_lshlrev_b32 v28, 6, v28
    v_lshlrev_b32 v29, 5, v21
    v_xor_b32 v28, v28, v29
    v_lshl_add_u32 v{QW}, v23, 7, v28
    v_lshl_add_u32 v{QW}, v22, 2, v{QW}
    s_lshl_b32 s{sT0}, s{sW}, 10
    s_add_u32 s{sT0}, s{sT0}, {L_QB}
    v_add_u32 v{QW}, s{sT0}, v{QW}
    v_and_b32 v28, 1, v21
    v_lshlrev_b32 v28, 2, v28
    v_and_b32 v29, 7, v20
    v_xor_b32 v29, v29, v28
    v_lshlrev_b32 v29, 4, v29
    v_lshl_add_u32 v{QR}, v21, 7, v29
    v_add_u32 v{QR}, {L_QB}, v{QR}
    v_lshl_add_u32 v29, v23, 1, v22
    v_and_b32 v29, 7, v29
    v_xor_b32 v29, v29, v28
    v_lshlrev_b32 v29, 4, v29
    v_lshl_add_u32 v{KR}, v21, 7, v29
    v_add_u32 v{KR}, {L_QB+512}, v{KR}
    v_lshlrev_b32 v{OW}, 8, v21
    v_and_b32 v29, 7, v20
    v_lshl_add_u32 v{OW}, v29, 5, v{OW}
    s_lshr_b32 s{sT0}, s{sW}, 1
    s_lshl_b32 s{sT0}, s{sT0}, 10
    s_and_b32 s{sC}, s{sW}, 1
    s_lshl_b32 s{sC}, s{sC}, 4
    s_add_u32 s{sT0}, s{sT0}, s{sC}
    s_add_u32 s{sT0}, s{sT0}, {L_OB}
    v_add_u32 v{OW}, s{sT0}, v{OW}
    v_lshlrev_b32 v28, 12, v23
    v_lshl_add_u32 v28, v21, 9, v28
    v_and_b32 v29, 1, v22
    v_lshl_add_u32 v28, v29, 3, v28
    v_and_b32 v29, 1, v21
    v_lshlrev_b32 v29, 3, v29
    v_lshl_add_u32 v29, v23, 1, v29     ; f2
    v_lshrrev_b32 v32, 1, v22           ; cc>>1
    s_and_b32 s{sT0}, s{sW}, 1
    s_lshl_b32 s{sT0}, s{sT0}, 3
    v_add_u32 v33, s{sT0}, v32
    v_xor_b32 v33, v33, v29
    v_lshl_add_u32 v{TRO}, v33, 4, v28
    s_lshr_b32 s{sT0}, s{sW}, 1
    s_lshl_b32 s{sT0}, s{sT0}, 14
    s_add_u32 s{sT0}, s{sT0}, {L_H0}
    v_add_u32 v{TRO}, s{sT0}, v{TRO}
    v_and_b32 v28, 1, v23
    v_lshrrev_b32 v29, 1, v23
    v_lshl_add_u32 v33, v28, 4, v29
    v_lshl_add_u32 v33, v21, 2, v33
    v_lshlrev_b32 v33, 8, v33
    v_lshl_add_u32 v29, v28, 1, v29
    v_and_b32 v28, 1, v21
    v_lshl_add_u32 v29, v28, 2, v29
    v_lshlrev_b32 v29, 1, v29
    s_lshl_b32 s{sT0}, s{sW}, 2
    v_add_u32 v28, s{sT0}, v32
    v_xor_b32 v28, v28, v29
    v_lshl_add_u32 v33, v28, 4, v33
    v_and_b32 v28, 1, v22
    v_lshl_add_u32 v{TRQ}, v28, 3, v33
    s_lshl_b32 s{sT0}, s{sW}, 14
    v_add_u32 v{TRQ}, s{sT0}, v{TRQ}
    v_mov_b32 v28, 0x3f80
    v_mov_b32 v29, 0x3f800000
    v_cmp_le_u32 vcc, 8, v20
    v_cndmask_b32 v28, v28, v29, vcc
    v_and_b32 v29, 7, v20
    v_mov_b32 v33, 0
    """)
    for r, val in enumerate([0, 1, 4, 5]):
        A(f"v_cmp_eq_u32 vcc, {val}, v29\nv_cndmask_b32 v{36+r}, v33, v28, vcc")
    A(f"""
    v_lshlrev_b32 v{LB}, 4, v0
    v_add_u32 v{G0}, s{sW2K}, v{LB}
    """)
    for p, r in ((1, MA1), (2, MA2), (3, MA3)):
        A(f"v_add_u32 v{r}, {2048*p}, v{G0}\nv_and_b32 v{r}, 0x1fff, v{r}")
    dma(1)
    A("v_mov_b32 v40, -1\nv_mov_b32 v41, -1\nv_mov_b32 v42, -1\nv_mov_b32 v43, -1")
    A(f"s_lshl_b32 s{sC}, s{sH}, 13")
    for sl in range(2):
        A(f"s_add_u32 s{sT0}, s{sC}, {WS_P + sl*0x40000}")
        A(f"buffer_store_dwordx4 v[40:43], v{G0}, {srd(WS)}, s{sT0} offen sc1")
        A(f"buffer_store_dwordx4 v[40:43], v{G0}, {srd(WS)}, s{sT0} offen offset:1024 sc1")
    for sl in range(1, 4):
        A(f"s_mov_b32 s{sT0}, {WS_M + sl*8192}")
        A(f"buffer_store_dword v40, v{MST}, {srd(WS)}, s{sT0} offen sc1")
    A(f"""
    s_waitcnt vmcnt(39)
    v_lshl_or_b32 v{VM}, v31, 16, v30
    v_min_u32 v{VM}, -2, v{VM}
    s_mov_b32 s{sT0}, {WS_M}
    buffer_store_dword v{VM}, v{MST}, {srd(WS)}, s{sT0} offen sc1
    """)
    dmap = {(WK, 0): lambda p, t: WKf(2*p, t), (WK, 1): lambda p, t: WKf(2*p+1, t), (WV, 0): lambda p, t: WVf(2*p, t), (WV, 1): lambda p, t: WVf(2*p+1, t), (WQ, 0): WQ_res}
    for gi in range(6):
        n = {0: 24, 1: 16, 2: 17, 4: 17}.get(gi, 16)
        A(f"s_waitcnt vmcnt({n})")
        if gi == 1:
            A(f"v_mov_b32 v30, 1\ns_mov_b64 exec, 1\nbuffer_atomic_add v30, off, {srd(DBG)}, 0 offset:{DBG_CH}\ns_mov_b64 exec, -1")
        A("s_barrier")
        if opt.get("tl"): A(f"s_memrealtime s[{36+2*gi}:{37+2*gi}]")
        if groups[gi][0] != WO: rd = trq_reads(dmap[groups[gi]], L_H0, T0, add10000=(gi % 2 == 1))
        else: rd = tro_reads(WO_res, range(4), T0)
        for r in rd: A(r)
        A("s_waitcnt lgkmcnt(0)\ns_barrier")
        if gi == 3: A(f"buffer_load_dword v35, off, {srd(DBG)}, 0 offset:{DBG_INIT} sc1")
        if gi == 5:
            A(f"v_readfirstlane_b32 s85, v35\ns_cmp_lg_u32 s85, 0\ns_cbranch_scc1 L_c_iok")
            wait_init(A, "c", 35)
            A(f"""
            L_c_iok:
            s_lshl_b32 s{sPRGKV}, s{sH}, 7
            s_add_u32 s{sPRGKV}, s{sPRGKV}, {WS_PRG + PRG_KV}
            v_lshrrev_b32 v33, 2, v{LB}
            buffer_load_dword v35, v33, {srd(DBG)}, 0 offen sc1
            buffer_load_dwordx4 v[20:23], off, {srd(WS)}, s{sPRGKV} sc1
            """)
        dma(gi + 2)
    import struct
    c = (128 ** -0.5) * 1.4426950408889634
    cb = struct.unpack("<I", struct.pack("<f", c))[0]
    A(f"""
    s_mov_b32 s{sC}, {cb:#x}
    s_mov_b32 s{sNC}, {cb | 0x80000000:#x}
    s_mov_b32 s{sCC}, {cb:#x}
    s_mov_b32 s{sCC+1}, {cb:#x}
    s_mov_b32 s{sS}, 0
    s_mov_b32 s{sNAN}, -1
    s_mov_b32 s{sG2}, -1
    s_lshl_b32 s{sKV}, s{sH}, 14
    s_add_u32 s{sKV}, s{sKV}, {WS_KV}
    s_mov_b32 s{sEX}, {WS_EX}
    s_add_u32 s{sKXD}, s{sW2K}, {L_KV}
    s_add_u32 s{sVXD}, s{sW2K}, {L_KV + 8192}
    """)
    A("s_waitcnt vmcnt(16)\ns_barrier")
    TMP = [48, 56, 64, 80, 88, 96, 104, 40]
    for r in tro_reads(lambda tp, k2: WO_res(4, k2) if tp == 0 else TMP[2*(tp-1)+k2], range(4), T0): A(r)
    A(f"s_mul_i32 s{sT0}, s{sW}, 12288\ns_add_u32 s{sT0}, s{sT0}, {L_WO}")
    A("s_waitcnt lgkmcnt(0)\ns_barrier")
    A(f"v_add_u32 v{TRO}, s{sT0}, v{LB}")
    for i in range(12): A(f"ds_write_b128 v{TRO}, v[{TMP[i>>1]+4*(i&1)}:{TMP[i>>1]+4*(i&1)+3}] offset:{1024*i}")
    A(f"ds_write_b128 v{LB}, v[36:39] offset:{L_SEL}")
    A("s_waitcnt lgkmcnt(0)")
    tl(A, opt, 2, T0)
    kvw = not opt.get("no_kv_wait")
    A(f"""
    s_mov_b32 s{sTMO}, {TMO}
    s_branch L_c_chk
    L_c_wait:
    buffer_load_dword v35, v33, {srd(DBG)}, 0 offen sc1
    buffer_load_dwordx4 v[20:23], off, {srd(WS)}, s{sPRGKV} sc1
    s_sub_u32 s{sTMO}, s{sTMO}, 1
    s_cmp_eq_u32 s{sTMO}, 0
    s_cbranch_scc1 L_fail
    s_waitcnt vmcnt(0)
    L_c_chk:
    v_readlane_b32 s{sT0}, v35, {DBG_CH//4}
    v_readlane_b32 s{sT1}, v35, {DBG_C0}
    s_cmp_lt_u32 s{sT0}, {CH_ALL}
    s_cbranch_scc1 L_c_wait
    """)
    if kvw:
        A(f"""
        v_min_u32 v20, v20, v21
        v_min_u32 v20, v20, v22
        v_readfirstlane_b32 s{sT0}, v20
        s_cmp_eq_u32 s{sT0}, 0
        s_cbranch_scc1 L_c_wait
        """)
    tl(A, opt, 3, T0)
    A(f"s_add_u32 s{sVV}, s{sKV}, 8192")
    for x in kv_dma(True, True): A(x)
    A("s_waitcnt vmcnt(4)\ns_barrier")
    for r in trq_reads(lambda p, t: TMP[2*p+t], L_H0, T0, add10000=True): A(r)
    A(f"s_lshl_b32 s{sT0}, s{sW}, 14\ns_add_u32 s{sT0}, s{sT0}, {L_WQ}")
    A("s_waitcnt lgkmcnt(0)\ns_barrier")
    A(f"v_add_u32 v{TRQ}, s{sT0}, v{LB}")
    for i in range(16): A(f"ds_write_b128 v{TRQ}, v[{TMP[i>>1]+4*(i&1)}:{TMP[i>>1]+4*(i&1)+3}] offset:{1024*i}")
    A("s_waitcnt lgkmcnt(0)")
    tl(A, opt, 4, T0)
    if opt.get("tl"):
        for gi in range(6):
            A(f"v_mov_b32 v{T0}, s{36+2*gi}\ns_lshl_b32 s96, s{sIDX}, 6\ns_add_u32 s96, s96, {WS_TRC + 2*MB + 32 + 4*gi}\nbuffer_store_dword v{T0}, off, {srd(WS)}, s96")
    dtl(A, opt, 11, T0)
    if opt.get("trace"):
        A(f"""
        s_memrealtime s[12:13]
        s_waitcnt lgkmcnt(0)
        s_add_u32 s14, s12, 1200
        s_and_b32 s14, s14, 0xfffffc00
        s_mov_b32 s{sTMO}, 100000
        L_cal:
        s_memrealtime s[12:13]
        s_memtime s[16:17]
        s_waitcnt lgkmcnt(0)
        s_sub_u32 s{sTMO}, s{sTMO}, 1
        s_cmp_eq_u32 s{sTMO}, 0
        s_cbranch_scc1 L_caldone
        s_sub_u32 s15, s12, s14
        s_cmp_lt_i32 s15, 0
        s_cbranch_scc1 L_cal
        L_caldone:
        v_mov_b32 v{T0}, s12
        v_mov_b32 v{T1}, s16
        s_lshl_b32 s12, s{sH}, 5
        s_lshl_b32 s13, s{sW}, 3
        s_add_u32 s12, s12, s13
        s_add_u32 s12, s12, {WS_TRC + 3*MB}
        buffer_store_dwordx2 v[{T0}:{T1}], off, {srd(WS)}, s12
        """)
    for r in wq_stage([0, 1]): A(r)
    A(f"""
    v_mov_b32 v{KXA}, v{LB}
    s_mov_b32 s{sMc}, {WS_M}
    s_mov_b32 s{sMn}, {WS_M + 8192}
    s_mov_b32 s{sMr}, {WS_M + 3*8192}
    s_mov_b32 s{sPc}, {WS_P}
    s_mov_b32 s{sP1}, {WS_P + 4096}
    s_add_u32 s{sPr}, s{sH13}, {WS_P + 0x40000}
    s_add_u32 s{sKV}, s{sKV}, {32*16384}
    s_add_u32 s{sVV}, s{sKV}, 8192
    s_xor_b32 s{sKXD}, s{sKXD}, 0x4000
    s_xor_b32 s{sVXD}, s{sVXD}, 0x4000
    s_add_u32 s{sPGA}, s{sPRGKV}, 12
    s_waitcnt lgkmcnt(0)
    s_cmp_lt_u32 s{sT1}, 32
    s_cbranch_scc1 L_step_slow
    """)

def wq_stage(ps):
    return [f"ds_read_b128 {R(WQ_stg(p,t)+4*hf,4)}, v{TRQ} offset:{1024*(4*p+2*t+hf)}" for p in ps for t in range(2) for hf in range(2)]
def wo_stage(idx):
    return [f"ds_read_b128 {R(WOS[i]+4*hf,4)}, v{TRO} offset:{1024*(2*i+hf)}" for i in idx for hf in range(2)]
def zero_accs():
    return [f"v_mov_b64 v[{r}:{r+1}], 0" for r in range(QA, QA+24, 2)]
def sched(A, mf_list, gaps):
    for x in gaps.get(-1, []): A(x)
    for i, m in enumerate(mf_list):
        A(m)
        for x in gaps.get(i, []): A(x)
    assert max(gaps) < len(mf_list)
class LdsTrack:
    def __init__(self, A, verbose=False): self.A, self.q, self.v = A, [], verbose
    def emit(self, x):
        if isinstance(x, tuple): tag, x = x
        else: tag = None
        if not x: return
        if x.startswith("ds_"): self.q.append(tag)
        if x.startswith("s_waitcnt") and "lgkmcnt(0)" in x: self.q = []
        self.A(x)
    def need(self, tags):
        idx = [i for i, t in enumerate(self.q) if t in tags]
        if not idx: return None
        n = len(self.q) - 1 - max(idx)
        self.q = self.q[max(idx)+1:]
        return f"s_waitcnt lgkmcnt({n})"
    def wait(self, tags):
        w = self.need(tags)
        if w: self.A(w)
def gap_cost(m, items):
    slot = 0; smf = "smfmac" in m; prev_valu = False
    for x in items:
        if isinstance(x, tuple): x = x[1]
        if not x: continue
        if x.startswith("s_nop"): slot += int(x.split()[1]) + 1; prev_valu = False; continue
        slot += 1
        if x.startswith(("ds_", "buffer_")):
            slot = max(slot, 2) + (2 if prev_valu else 0); prev_valu = False
            if "store_dwordx4" in x or "write_b128" in x: slot += 3
            if "store_dwordx2" in x: slot += 1
        elif x.startswith("v_"):
            slot = max(slot, 3 if smf else 2) + (1 if x.startswith(("v_exp", "v_rcp")) else 0); prev_valu = True
        else: prev_valu = False
    return max(0, slot - 3) * 4
def sched2(T, mfs, gaps, name=""):
    assert max(gaps) < len(mfs)
    T.wait(mfs[0][1])
    over = []
    for i, (m, _) in enumerate(mfs):
        T.A(m)
        items = list(gaps.get(i, []))
        nxt = mfs[i+1][1] if i + 1 < len(mfs) else []
        late = [x[0] for x in items if isinstance(x, tuple) and x[0] in nxt]
        assert not late, (i, late)
        w = T.need(nxt)
        if w and not any(isinstance(x, str) and "lgkmcnt(0)" in x for x in items): items = [w] + items
        c = gap_cost(m, items)
        if c: over.append((i, c))
        for x in items: T.emit(x)
    if T.v: print("overflow", name, over, sum(c for _, c in over))
def spread(gaps, start, items, per=1, step=1, front=False):
    items = list(items); i = start
    while items:
        chunk, items = items[:per], items[per:]
        gaps[i] = (chunk + gaps.get(i, [])) if front else (gaps.get(i, []) + chunk)
        i += step
    return i

def kv_dma(k, v):
    out = []
    if k:
        out += [f"s_mov_b32 m0, s{sKXD}", f"buffer_load_dwordx4 v{G0}, {srd(WS)}, s{sKV} offen sc1 lds",
                f"buffer_load_dwordx4 v{G0}, {srd(WS)}, s{sKV} offen offset:1024 sc1 lds"]
    if v:
        out += [f"s_mov_b32 m0, s{sVXD}", f"buffer_load_dwordx4 v{G0}, {srd(WS)}, s{sVV} offen sc1 lds",
                f"buffer_load_dwordx4 v{G0}, {srd(WS)}, s{sVV} offen offset:1024 sc1 lds"]
    return out

def ld2(b, so):
    return [f"buffer_load_dwordx4 v[{b}:{b+3}], v{G0}, {srd(WS)}, s{so} offen sc1",
            f"buffer_load_dwordx4 v[{b+4}:{b+7}], v{G0}, {srd(WS)}, s{so} offen offset:1024 sc1"]
def chk8(b, t0, t1):
    return [f"v_max3_u32 v{t0}, v{b}, v{b+1}, v{b+2}", f"v_max3_u32 v{t1}, v{b+3}, v{b+4}, v{b+5}",
            f"v_max3_u32 v{t0}, v{t0}, v{b+6}, v{b+7}", f"v_max_u32 v{t0}, v{t0}, v{t1}", f"v_cmp_eq_u32 vcc, -1, v{t0}"]
def retry(A, b, so, back, post=()):
    A("s_mov_b64 exec, vcc")
    for x in ld2(b, so): A(x)
    A(f"""
    s_mov_b64 exec, -1
    s_sub_u32 s{sTMO}, s{sTMO}, 1
    s_cmp_eq_u32 s{sTMO}, 0
    s_cbranch_scc1 L_fail
    """)
    for x in post: A(x)
    A(f"s_branch {back}")

def fin(acc, d0, d1):
    return [f"v_add_f32 v{acc}, v{acc}, v{acc+1}", f"v_add_f32 v{acc+4}, v{acc+4}, v{acc+5}",
            f"v_add_f32 v{acc+2}, v{acc+2}, v{acc+3}", f"v_add_f32 v{acc+6}, v{acc+6}, v{acc+7}",
            f"v_cvt_pk_bf16_f32 v{d0}, v{acc}, v{acc+4}", f"v_cvt_pk_bf16_f32 v{d1}, v{acc+2}, v{acc+6}"]
def vfin():
    a = VA
    return [f"v_add_f32 v{a}, v{a}, v{a+1}", f"v_add_f32 v{a+2}, v{a+2}, v{a+3}",
            f"v_add_f32 v{a+4}, v{a+4}, v{a+5}", f"v_add_f32 v{a+6}, v{a+6}, v{a+7}",
            f"v_cvt_pk_bf16_f32 v{VM}, v{a}, v{a+2}", f"v_cvt_pk_bf16_f32 v{VM+1}, v{a+4}, v{a+6}"]
def mem_reads():
    out = []
    for ks in range(2, 8):
        out.append(f"ds_read_b128 v[{MEM+4*ks}:{MEM+4*ks+3}], v{[0,MA1,MA2,MA3][ks>>1]} offset:{L_MEM+1024*(ks&1)}")
    return out
def ex_store(): return f"buffer_store_dword v{VM}, v{MST}, {srd(WS)}, s{sEX} offen sc1"
def mem_writes(): return [f"ds_write_b128 v{G0}, v[{MEM}:{MEM+3}] offset:{L_MEM}", f"ds_write_b128 v{G0}, v[{MEM+4}:{MEM+7}] offset:{L_MEM+1024}"]

STAMP_REGS = list(range(12, 56, 2)) + list(range(86, 88, 2))
class Stamps:
    def __init__(self, A, opt): self.A, self.on, self.names, self.probe = A, opt.get("trace"), [], opt.get("probe")
    def active(self, name): return self.on and (not self.probe or name in self.probe)
    def __call__(self, name):
        if not self.active(name): return
        r = STAMP_REGS[len(self.names)]; self.names.append(name)
        self.A(f"s_memtime s[{r}:{r+1}]")

def chain_step(A, opt, slow):
    sc = " sc1" if slow else ""
    tg = "s" if slow else "f"
    ST = Stamps(A, opt)
    def STI(name):
        if not ST.active(name): return []
        r = STAMP_REGS[len(ST.names)]; ST.names.append(name); return [f"s_memtime s[{r}:{r+1}]"]
    A(f"L_step_{'slow' if slow else 'fast'}:")
    dup = opt.get("dup", 0)
    def nops(n):
        while n > 0:
            k = min(16, max(1, n // 4)); A(f"s_nop {k-1}"); n -= 4*k
    def polls(b, so, delays, work, tailv, b2=None):
        work = list(work)
        for di, d in enumerate(delays):
            while d > 0 and work:
                c_, t_ = work.pop(0); A(t_); d -= c_
            if d > 0: nops(d)
            for x in ld2(b2 if di and b2 is not None else b, so): A(x)
        for c_, t_ in work: A(t_)
        nops(tailv[0])
        for x in tailv[1]: A(x)
    GP = opt.get("gp", [[150, 120]]*4); RPD = opt.get("rp", [[200, 140]]*4)
    place = dict(e=6, k=[8, 9, 12, 14, 15, 18], p=21, r1="D", r2="E", r3="D"); place.update(opt.get("place", {}))
    nG = sum(1 for k in ("r1", "r2", "r3") if place[k] == "G")
    NG = SM if nG else NEG
    D2 = MEM + 24
    for x in ld2(MEM, sMc) + zero_accs(): A(x)
    A(f"s_mov_b32 s{sTMO}, {TMO}\ns_waitcnt vmcnt(0)")
    A(f"L_gw{tg}:")
    A(f"s_waitcnt vmcnt({2+nG}) lgkmcnt(0)")
    ST("gret")
    gv = opt.get("gv", 0)
    for x in (chk8(MEM, TA, TB) if opt.get("atom64", 0) < 2 else [f"v_max_u32 v{TA}, v{MEM}, v{MEM+4}", f"v_cmp_eq_u32 vcc, -1, v{TA}"]): A(x)
    if gv == 1:
        for x in mem_writes(): A(x)
        A(f"s_cbranch_vccnz L_gr{tg}")
    sk = opt.get("skip", "")
    T = LdsTrack(A, opt.get("verbose") and not slow)
    own = [(x, []) for x in [q_(0,0), q_(0,1), q_(1,0), q_(1,1), k_(0,0), k_(0,1), k_(1,0), k_(1,1), v_(0,0), v_(0,1), v_(1,0), v_(1,1)]]
    qs = [(q_(ks, t), [f"m{ks}", f"w{ks}{t}"]) for ks in range(2, 8) for t in range(2)]
    ks_ = [(k_(ks, t), []) for t in range(2) for ks in range(2, 8)]
    vs = [(v_(ks, t), []) for ks in range(2, 8) for t in range(2)]
    def KXr(kt, j): return KX + 8*j + 4*kt
    sc_ = []
    for j in range(4):
        c0 = "0" if j == 0 else None
        tri = [(mf(SX, KXr(0, j), QO + 4*j, c0), [f"q{j}"]), (mf(SX + 4, KXr(1, j), QO + 4*j, c0), []), (mf(SM, KOr[j], QO + 4*j, c0), [f"k{j}", f"q{j}"])]
        sc_ += tri if j < 3 else [tri[2], tri[0], tri[1]]
    g = {}
    mw = mem_writes(); mr = [(f"m{ks}", x) for ks, x in zip(range(2, 8), mem_reads())]
    if gv == 0: g[0] = [mw[0]]; g[1] = [mw[1], f"s_cbranch_vccnz L_gr{tg}"]
    AB = opt.get("ab", 5 if gv == 0 else 4)
    g[AB] = ["s_waitcnt lgkmcnt(0)", "s_barrier"] + STI("pastA") + mr[:1]
    w5 = [(f"w5{i_>>1}", x) for i_, x in enumerate(wq_stage([2]))]; w7 = [(f"w7{i_>>1}", x) for i_, x in enumerate(wq_stage([3]))]
    spread(g, AB + 1, mr[1:] + w5)
    spread(g, 15, w7)
    kx = [f"ds_read_b128 v[{KXr(kt,j)}:{KXr(kt,j)+3}], v{KXA} offset:{L_KV+4096*kt+1024*j}" for j in range(4) for kt in range(2)]
    spread(g, 22, kx[:2]); spread(g, 24, kx[2:])
    g[23] = STI("qdone") + g[23]
    f = fin(QA, QA+1, QA+3)
    g[24] = ["s_nop 0"] + g[24]; g[25] = ["s_nop 0"] + g[25]
    for gi, x in zip(range(26, 32), [f[0], f[2], f[1], f[3], f[4], f[5]]): g.setdefault(gi, []).append(x)
    g[32] = [f"ds_write2_b32 v{QW}, v{QA+1}, v{QA+3} offset0:0 offset1:4"]
    fk = fin(KA, KA+1, KA+3)
    g[33] = [fk[0]]; g[34] = [fk[2]]; g[35] = ["s_nop 1"] + STI("kdone")
    g[36] = ["s_nop 2"]
    g[37] = ["s_nop 0", fk[1], fk[3], fk[4], fk[5]]
    g[38] = [f"ds_write2_b32 v{QW}, v{KA+1}, v{KA+3} offset0:128 offset1:132"] + STI("kw")
    qo = [(f"q{j}", f"ds_read_b128 v[{QO+4*j}:{QO+4*j+3}], v{QR} offset:{1024*j}") for j in range(4)]
    ko = [(f"k{j}", f"ds_read_b128 v[{KOr[j]}:{KOr[j]+3}], v{KR} offset:{1024*j}") for j in range(4)]
    vx = [("vx", f"ds_read_b128 v[{VX+4*t}:{VX+4*t+3}], v{TA} offset:{L_KV+8192+1024*t}") for t in range(2)]
    kd = kv_dma(True, True)
    side = dict(e=ex_store(), p=f"buffer_load_dword v{PG}, off, {srd(WS)}, s{sPGA} sc1",
                r1=f"buffer_store_dwordx4 v[{NG}:{NG+3}], v{G0}, {srd(WS)}, s{sPr} offen{sc}",
                r2=f"buffer_store_dwordx4 v[{NG}:{NG+3}], v{G0}, {srd(WS)}, s{sPr} offen offset:1024{sc}",
                r3=f"buffer_store_dword v{NG}, v{MST}, {srd(WS)}, s{sMr} offen{sc}")
    if opt.get("atom64"):
        side["r1"] = f"v_lshlrev_b32 v{NG+1}, 2, v{LB}\ns_add_u32 s{sT0}, s{sPr}, s{sW2K}\ns_mov_b32 exec_hi, 0\nbuffer_store_dword v{NG}, v{NG+1}, {srd(WS)}, s{sT0} offen{sc}\ns_mov_b32 exec_hi, -1"
        side["r2"] = ""
    def ins(gi, x):
        it = g.setdefault(gi, [])
        tx = lambda y: y[1] if isinstance(y, tuple) else y
        pos = 0 if x.startswith("s_") else next((k_i for k_i, y in enumerate(it) if tx(y).startswith("v_")), len(it))
        it.insert(pos, x)
    nside = 0
    for k in "ep":
        if k not in sk: ins(place[k], side[k]); nside += 1
    if "d" not in sk:
        for x, gi in zip(kd, place["k"]): ins(gi, x)
        nside += 4
    if opt.get("dlat"):
        g[place["k"][0]] = STI("d0") + g[place["k"][0]]
        g[33] = ["s_waitcnt vmcnt(0)"] + STI("d1") + g[33]
    g[39] = [f"v_add_u32 v{TA}, s{sW2K}, v{KXA}"]
    g[41] = [f"s_waitcnt vmcnt({nside})"]
    g[40] = [f"v_xor_b32 v{KXA}, 0x4000, v{KXA}"]
    CB = opt.get("cb", 42)
    g[CB] = ["s_waitcnt lgkmcnt(0)", "s_barrier"] + STI("pastC")
    ws_ = [(f"o{i_>>1}", x) for i_, x in enumerate(wo_stage(range(6)))]
    rd = [qo[0], ko[0], qo[1], ko[1], qo[2], ko[2], qo[3], ko[3], vx[0], vx[1]] + ws_[:6]
    at = [CB + i_ for i_ in range(10)] + [53, 54, 56, 57, 59, 59]
    for x, gi in zip(rd, at): g.setdefault(gi, []).append(x)
    vf = vfin()
    vl = vf + [f"v_mov_b32 v{ON}, 0x3f803f80", f"v_mov_b32 v{ON+1}, 0x3f803f80", f"v_mov_b64 v[{ON+2}:{ON+3}], v[{ON}:{ON+1}]", f"v_mov_b32 v{PMA+1}, 0", f"v_mov_b32 v{PMB}, 0"]
    for x, gi in zip(vl, [50, 51, 52, 52, 53, 54, 55, 55, 56, 57, 58]): g.setdefault(gi, []).append(x)
    g[59] = STI("sdone") + g[59]
    for gi in range(6, 60):
        x = STI(f"g{gi}") if ST.probe else []
        if x: g[gi] = x + g.get(gi, [])
    sched2(T, own + qs + ks_ + vs + sc_, g, "main")
    s = SX
    A(f"""
    v_max_f32 v{TA}, v{SM}, v{SM+1}
    v_max3_f32 v{TA}, v{TA}, v{s}, v{s+1}
    v_max3_f32 v{TA}, v{TA}, v{s+2}, v{s+3}
    v_max3_f32 v{TA}, v{TA}, v{s+4}, v{s+5}
    v_max3_f32 v{TA}, v{TA}, v{s+6}, v{s+7}
    v_mov_b32 v{TB}, v{TA}
    v_permlane16_swap_b32 v{TA}, v{TB}
    v_max_f32 v{TA}, v{TA}, v{TB}
    v_mov_b32 v{TB}, v{TA}
    v_permlane32_swap_b32 v{TA}, v{TB}
    v_max_f32 v{TA}, v{TA}, v{TB}
    v_mul_f32 v{TA}, s{sNC}, v{TA}
    """)
    ST("max")
    A(f"v_pk_fma_f32 v[{SM}:{SM+1}], v[{SM}:{SM+1}], s[{sCC}:{sCC+1}], v[{TA}:{TB}] op_sel_hi:[1,1,0]")
    for i in range(0, 8, 2): A(f"v_pk_fma_f32 v[{s+i}:{s+i+1}], v[{s+i}:{s+i+1}], s[{sCC}:{sCC+1}], v[{TA}:{TB}] op_sel_hi:[1,1,0]")
    for i in range(2): A(f"v_exp_f32 v{SM+i}, v{SM+i}")
    for i in range(2): A(f"v_exp_f32 v{s+i}, v{s+i}")
    A(f"v_cvt_pk_bf16_f32 v{PMA}, v{SM}, v{SM+1}\nv_cvt_pk_bf16_f32 v{PMB+1}, v{SM}, v{SM+1}")
    ex = [f"v_exp_f32 v{s+i}, v{s+i}" for i in range(8)]
    cv = [f"v_cvt_pk_bf16_f32 v{PX+i}, v{s+2*i}, v{s+2*i+1}" for i in range(4)]
    def mf16c(acc, a, b): return f"v_mfma_f32_16x16x16_bf16 {R(acc,4)}, {R(a,2)}, {R(b,2)}, 0"
    A(ex[2]); A(ex[3])
    A(mf16c(LX, ON, PMA)); A(ex[4]); A(cv[0])
    A(mf16c(OX, VM, PMA)); A(ex[5]); A(cv[1])
    A(mf16c(OX + 4, VM, PMB)); A(ex[6]); A(ex[7]); A(cv[2]); A(cv[3])
    ST("exp")
    T.wait(["vx"])
    A(mf(LX, ON, PX)); T.emit(ws_[6]); A("" if nG else f"v_mov_b64 v[{NEG}:{NEG+1}], -1")
    A(mf(OX, VX, PX)); T.emit(ws_[7]); A("" if nG else f"v_mov_b64 v[{NEG+2}:{NEG+3}], -1")
    A(mf(OX + 4, VX + 4, PX)); A(f"v_mov_b64 v[{ZZ}:{ZZ+1}], 0")
    ST("pvm")
    A(f"v_rcp_f32 v{TA}, v{LX}")
    for i in range(0, 8, 2): A(f"v_pk_mul_f32 v[{OX+i}:{OX+i+1}], v[{OX+i}:{OX+i+1}], v[{TA}:{TB}] op_sel_hi:[1,0]")
    for i in range(4): A(f"v_cvt_pk_bf16_f32 v{SM+i}, v{OX+i}, v{OX+4+i}")
    A(f"ds_write_b128 v{OW}, v[{SM}:{SM+3}]")
    A(f"v_mfma_f32_32x32x8_bf16 v[{MEM}:{MEM+15}], v[{ZZ}:{ZZ+1}], v[{ZZ}:{ZZ+1}], 0")
    ST("preD")
    for k, pl in place.items():
        if pl == "D": A(side[k])
    A(f"v_mfma_f32_32x32x8_bf16 v[{MEM+16}:{MEM+31}], v[{ZZ}:{ZZ+1}], v[{ZZ}:{ZZ+1}], 0")
    A("s_waitcnt lgkmcnt(0)\ns_barrier")
    ST("pastD")
    A(f"ds_read_b128 v[{OO}:{OO+3}], v{LB} offset:{L_OB}\nds_read_b128 v[{OO+4}:{OO+7}], v{LB} offset:{L_OB+1024}")
    for k, pl in place.items():
        if pl == "E": A(side[k])
    A(f"s_add_u32 s{sPr}, s{sPc}, s{sH13}")
    A("s_waitcnt lgkmcnt(1)")
    ST("wo0")
    def wo(tau, k2): return sm(MEM + 4*tau, OO + 4*k2, WO_res(tau, k2) if tau < 5 else WOS[2*(tau-5)+k2])
    def wfin(tau):
        a = MEM + 4*tau; d = MEM + 8*(tau >> 1) + (tau & 1)
        return [f"v_add_f32 v{a}, v{a}, v{a+1}", f"v_add_f32 v{a+2}, v{a+2}, v{a+3}", f"v_cvt_pk_bf16_f32 v{d}, v{a}, v{a+2}"]
    def sst(k): return f"buffer_store_dwordx2 v[{MEM+8*k}:{MEM+8*k+1}], v{SCAT}, {srd(WS)}, s{[sPc, sP1][k>>1]} offen offset:{2048*(k&1)}{sc}"
    ws_ = [x[1] for x in ws_]
    g = {0: ["s_waitcnt lgkmcnt(0)"], 1: ["s_nop 0", ws_[8]], 2: ["s_nop 0", ws_[9]], 3: ["s_nop 0", ws_[10]]}
    for tau in range(6):
        w = wfin(tau); g[2*tau+4] = ["s_nop 0", w[0]]; g[2*tau+5] = ["s_nop 0"] + w[1:]
    g[4][0] = ws_[11]
    g[8][0] = sst(0); g[12][0] = sst(1); g[13][0] = "s_waitcnt lgkmcnt(0)"
    sched(A, [wo(tau, k2) for tau in range(8) for k2 in range(2)], g)
    A(sst(2))
    for x in wfin(6) + wfin(7): A(x)
    A(sst(3))
    ST("scat")
    SEL, RA, RP = MEM + 4, MEM + 20, MEM + 8
    book = f"""s_mov_b32 s{sMr}, s{sMc}
    s_mov_b32 s{sMc}, s{sMn}
    s_add_u32 s{sMn}, s{sMn}, 8192
    s_and_b32 s{sMn}, s{sMn}, 0x7fff
    s_xor_b32 s{sPc}, s{sPc}, 0x40000
    s_xor_b32 s{sP1}, s{sP1}, 0x40000
    s_add_u32 s{sKV}, s{sKV}, {32*16384}
    s_add_u32 s{sVV}, s{sKV}, 8192
    s_xor_b32 s{sKXD}, s{sKXD}, 0x4000
    s_xor_b32 s{sVXD}, s{sVXD}, 0x4000
    s_add_u32 s{sEX}, s{sEX}, 8192
    s_add_u32 s{sT0}, s{sS}, 3
    s_lshr_b32 s{sKVT}, s{sT0}, 2
    s_min_u32 s{sKVT}, s{sKVT}, 15
    s_mov_b32 s{sPGO}, s{sPGA}
    s_add_u32 s{sS}, s{sS}, 1
    s_add_u32 s{sT0}, s{sS}, 3
    s_and_b32 s{sT0}, s{sT0}, 3
    s_lshl_b32 s{sT0}, s{sT0}, 2
    s_add_u32 s{sPGA}, s{sT0}, s{sPRGKV}""".split("\n")
    if opt.get("trace"): A(f"s_mov_b32 s79, s{sTMO}")
    work = [(11, f"ds_read_b128 v[{SEL}:{SEL+3}], v{LB} offset:{L_SEL}")] + [(11, x) for x in wq_stage([0, 1])] + [(4, x) for x in book]
    for k in range(3): A(f"s_cmp_eq_u32 s{sW}, {k}\ns_cbranch_scc1 L_v{k}{tg}")
    names0 = list(ST.names)
    for k in (3, 2, 1, 0):
        ST.names = list(names0)
        rp, gp = RPD[k], GP[k]
        A(f"L_v{k}{tg}:")
        polls(RP, sPr, [max(0, rp[0] - 8*min(k+1, 3))] + rp[1:], work, (0, [f"v_mov_b32 v{TA}, 0"] * opt.get("rwarm", 0)))
        def rtail(lab):
            for x in (chk8(RP, TA, TB) if not opt.get("atom64") else [f"v_max_u32 v{TA}, v{RP}, v{RP+4}", f"v_cmp_eq_u32 vcc, -1, v{TA}"]): A(x)
            A(mf(RA, SEL, RP, "0")); A(mf(RA, SEL, RP + 4))
            A(f"s_cbranch_vccnz {lab}")
            A(f"v_readfirstlane_b32 s{sT1}, v{PG}")
            for x in zero_accs()[:opt.get("zsh", 4)]: A(x)
            A(f"""
            v_add_f32_dpp v{RA}, v{RA}, v{RA} row_shr:4 row_mask:0xf bank_mask:0xf
            v_add_f32_dpp v{RA+1}, v{RA+1}, v{RA+1} row_shr:4 row_mask:0xf bank_mask:0xf
            v_add_f32_dpp v{RA}, v{RA}, v{RA} row_shr:8 row_mask:0xf bank_mask:0xf
            v_add_f32_dpp v{RA+1}, v{RA+1}, v{RA+1} row_shr:8 row_mask:0xf bank_mask:0xf
            v_cvt_pk_bf16_f32 v{VM}, v{RA}, v{RA+1}
            buffer_store_dword v{VM}, v{MST}, {srd(WS)}, s{sMc} offen{sc}
            """)
        A(f"s_waitcnt vmcnt({2*(len(rp)-1)}) lgkmcnt(0)")
        nm_ = list(ST.names); ST("rret")
        rtail(f"L_rr{k}{tg}")
        A(f"L_rok{k}{tg}:")
        ST("red")
        if not opt.get("no_kv_wait"):
            A(f"s_cmp_gt_u32 s{sT1}, s{sKVT}\ns_cbranch_scc0 L_kvw{k}{tg}\nL_kvok{k}{tg}:")
        A(f"s_cmp_ge_u32 s{sS}, 63\ns_cbranch_scc1 L_last")
        spent = 16
        if opt.get("tot") or opt.get("enc"):
            A(f"s_cmp_lg_u32 s{sS}, 3\ns_cbranch_scc1 L_nt{k}{tg}\ns_memtime s[98:99]\ns_memrealtime s[94:95]\nL_nt{k}{tg}:"); spent += 24
        if opt.get("trace"):
            A("s_waitcnt lgkmcnt(0)")
            for i in range(len(ST.names)): A(f"v_writelane_b32 v{TA}, s{STAMP_REGS[i]}, {i}")
            A(f"v_writelane_b32 v{TA}, s{sTMO}, 31")
            A(f"v_writelane_b32 v{TA}, s79, 30")
            if not ST.probe or len(ST.probe) > 2: open("stamps.txt", "w").write(" ".join(ST.names))
            A(f"""s_lshl_b32 s{sT0}, s{sS}, 14
            s_lshl_b32 s{sT1}, s{sH}, 9
            s_add_u32 s{sT0}, s{sT0}, s{sT1}
            s_add_u32 s{sT0}, s{sT0}, {WS_TRC - 16384 + 128*k}
            v_lshrrev_b32 v{TB}, 2, v{LB}
            s_mov_b32 exec_hi, 0
            buffer_store_dword v{TA}, v{TB}, {srd(WS)}, s{sT0} offen
            s_mov_b64 exec, -1""")
            spent += 70 + 4*len(ST.names)
        polls(MEM, sMc, [max(0, gp[0] - spent)] + gp[1:], [(4, f"s_mov_b32 s{sTMO}, {TMO}")] + [(4, x) for x in zero_accs()[opt.get("zsh", 4):] + [f"v_mov_b64 v[{SM}:{SM+1}], -1", f"v_mov_b64 v[{SM+2}:{SM+3}], -1"]],
              (0, [side[k_] for k_ in ("r1", "r2", "r3") if place[k_] == "G"] + [f"v_mov_b32 v{TA}, 0"] * opt.get("gwarm", 0)))
        assert len(gp) == 2
        A(f"s_branch L_gw{tg}")
        r3 = opt.get("r3", 1)
        A(f"L_rs{k}{tg}:")
        if not r3:
            for x in ld2(RP, sPr): A(x)
        A(f"L_rr{k}{tg}:")
        if r3:
            for x in ld2(RP, sPr): A(x)
        A(f"s_sub_u32 s{sTMO}, s{sTMO}, 1\ns_cbranch_scc1 L_fail")
        A(f"s_waitcnt vmcnt({2*(len(rp)-1) if r3 else 0})")
        sv_ = ST.names; ST.names = nm_; ST("rret"); ST.names = sv_
        rtail(f"L_rs{k}{tg}")
        A(f"s_branch L_rok{k}{tg}")
        if not opt.get("no_kv_wait"):
            A(f"""
            L_kvw{k}{tg}:
            buffer_load_dword v{PG}, off, {srd(WS)}, s{sPGO} sc1
            s_sub_u32 s{sTMO}, s{sTMO}, 1
            s_cmp_eq_u32 s{sTMO}, 0
            s_cbranch_scc1 L_fail
            s_waitcnt vmcnt(0)
            v_readfirstlane_b32 s{sT1}, v{PG}
            s_cmp_gt_u32 s{sT1}, s{sKVT}
            s_cbranch_scc0 L_kvw{k}{tg}
            s_branch L_kvok{k}{tg}
            """)
    A(f"L_gr{tg}:")
    if opt.get("gmask", 0): A("s_mov_b64 exec, vcc")
    for x in ld2(MEM, sMc): A(x)
    if opt.get("gmask", 0): A("s_mov_b64 exec, -1")
    if gv == 0:
        for r in range(QA, QA+8, 2): A(f"v_mov_b64 v[{r}:{r+1}], 0")
    A(f"s_sub_u32 s{sTMO}, s{sTMO}, 1\ns_cbranch_scc0 L_gw{tg}\ns_branch L_fail")

def chain_last(A, opt):
    A("L_last:")
    A(ex_store())
    tl(A, opt, 7, TA)
    dtl(A, opt, 12, TA)
    if opt.get("tot"):
        A(f"""
        s_memtime s[100:101]
        s_memrealtime s[92:93]
        s_waitcnt lgkmcnt(0)
        s_sub_u32 s100, s100, s98
        s_sub_u32 s92, s92, s94
        v_mov_b32 v{TA}, s100
        v_mov_b32 v{TB}, s92
        s_mov_b64 exec, 1
        buffer_store_dword v{TA}, off, {srd(DBG)}, 0 offset:56
        buffer_store_dword v{TB}, off, {srd(DBG)}, 0 offset:52
        """)
    enc = opt.get("enc")
    if enc:
        A("s_memtime s[86:87]\ns_memrealtime s[92:93]\ns_waitcnt lgkmcnt(0)")
        if enc == 1: A("s_sub_u32 s86, s94, s100")
        if enc == 2: A("s_sub_u32 s86, s92, s94\ns_lshr_b32 s86, s86, 1")
        if enc == 3: A("s_sub_u32 s86, s86, s98\ns_lshr_b32 s86, s86, 6")
        if enc == 4: A("s_mov_b32 s86, 0")
        A("""
        s_add_u32 s86, s86, 1000
        s_add_u32 s86, s86, s92
        L_enc:
        s_memrealtime s[92:93]
        s_waitcnt lgkmcnt(0)
        s_sub_u32 s87, s92, s86
        s_cmp_lt_i32 s87, 0
        s_cbranch_scc1 L_enc
        """)
    A("s_branch L_end")

def chain(A, opt):
    chain_init(A, opt)
    chain_step(A, opt, False)
    chain_step(A, opt, True)
    chain_last(A, opt)
```
